```python
import torch

def _softmax(x, axis=-1):
    return torch.softmax(x, dim=axis)

def _gelu(x):
    return torch.nn.functional.gelu(x, approximate='tanh')

def _silu(x):
    return torch.nn.functional.silu(x)

def _sigmoid(x):
    return torch.sigmoid(x)

def _layernorm(x, axis=-1, eps=1e-05):
    m = x.mean(dim=axis, keepdim=True)
    v = x.var(dim=axis, keepdim=True, unbiased=False)
    return (x - m) / torch.sqrt(v + eps)

def _scatter_add(tgt, idx, src, axis=0):
    return tgt.clone().index_add_(axis, idx, src)

def _segment_sum(src, seg, n):
    out = torch.zeros((n,) + src.shape[1:], dtype=src.dtype)
    return out.index_add_(0, seg, src)

def _pad(x, pw):
    flat = tuple((v for pair in reversed(pw) for v in pair))
    return torch.nn.functional.pad(x, flat)
kernel_name = 'sequential_preLN__memory_aug_recurrent_mem_tr__mixer_token_mlp__prompt'

def setup_inputs():

    _w = lambda a: (lambda t: t.to(torch.bfloat16) if t.is_floating_point() else t)(torch.as_tensor(a))

    def _A_setup():
        B, S, Dm = (1, 2048, 576)
        H, Dh = (32, 128)
        M, seg = (8, 32)
        seg = min(seg, S)
        S = S // seg * seg
        return {'x': _w((lambda *s: torch.randn(*s, dtype=torch.bfloat16) * 0.05)(B, S, Dm)), 'mem0': _w((lambda *s: torch.randn(*s, dtype=torch.bfloat16) * 0.2)(B, M, Dm)), 'Wq': _w((lambda *s: torch.randn(*s, dtype=torch.bfloat16) * 1.6)(Dm, H, Dh) * Dm ** (-0.5)), 'Wk': _w((lambda *s: torch.randn(*s, dtype=torch.bfloat16) * 1.6)(Dm, H, Dh) * Dm ** (-0.5)), 'Wv': _w((lambda *s: torch.randn(*s, dtype=torch.bfloat16) * 0.2)(Dm, H, Dh) * Dm ** (-0.5)), 'Wo': _w((lambda *s: torch.randn(*s, dtype=torch.bfloat16) * 0.2)(H, Dh, Dm) * (H * Dh) ** (-0.5)), 'seg_len': seg}
    _A_in = _A_setup()

    def _B_setup():
        B, S, D, F = (1, 2048, 576, 4608)
        return {'x': _w((lambda *s: torch.randn(*s, dtype=torch.bfloat16) * 0.05)(B, S, D)), 'w1': _w((lambda *s: torch.randn(*s, dtype=torch.bfloat16) * 0.4)(S, F) * S ** (-0.5)), 'b1': _w((lambda *s: torch.randn(*s, dtype=torch.bfloat16) * 3.2)(F) * 0.02), 'w2': _w((lambda *s: torch.randn(*s, dtype=torch.bfloat16) * 0.8)(F, S) * F ** (-0.5)), 'b2': _w((lambda *s: torch.randn(*s, dtype=torch.bfloat16) * 3.2)(S) * 0.02)}
    _B_in = _B_setup()
    return {'A_x': _A_in['x'], 'A_mem0': _A_in['mem0'], 'A_Wq': _A_in['Wq'], 'A_Wk': _A_in['Wk'], 'A_Wv': _A_in['Wv'], 'A_Wo': _A_in['Wo'], 'A_seg_len': _A_in['seg_len'], 'B_x': _B_in['x'], 'B_w1': _B_in['w1'], 'B_b1': _B_in['b1'], 'B_w2': _B_in['w2'], 'B_b2': _B_in['b2']}

def reference(A_x, A_mem0, A_Wq, A_Wk, A_Wv, A_Wo, A_seg_len, B_x, B_w1, B_b1, B_w2, B_b2):

    def _A_ref(x, mem0, Wq, Wk, Wv, Wo, seg_len):
        B, S, Dm = x.shape
        H, Dh = (Wq.shape[1], Wq.shape[2])
        M = mem0.shape[1]
        scale = Dh ** (-0.5)
        n_seg = S // seg_len
        L = M + seg_len
        idx = torch.arange(L)
        mask = (idx[:, None] < M) | (idx[:, None] >= idx[None, :])
        mem = mem0
        outs = []
        for s in range(n_seg):
            xs = x[:, s * seg_len:(s + 1) * seg_len, :].clone()
            h = torch.concatenate([mem, xs], axis=1)
            q = torch.einsum('btd,dhe->bhte', h, Wq)
            k = torch.einsum('btd,dhe->bhte', h, Wk)
            v = torch.einsum('btd,dhe->bhte', h, Wv)
            scores = torch.einsum('bhqe,bhke->bhqk', q, k) * scale
            scores = torch.where(mask[None, None], scores, -1000000000.0)
            p = _softmax(scores, axis=-1)
            o = torch.einsum('bhqk,bhke->bhqe', p, v)
            o = torch.einsum('bhte,hed->btd', o, Wo)
            mem = o[:, :M, :].clone()
            outs.append(o[:, M:, :])
        return torch.concatenate(outs, axis=1)

    def _B_ref(x, w1, b1, w2, b2):
        B, S, D = x.shape
        h = _layernorm(x, axis=-1)
        u = torch.einsum('bsd,sf->bdf', h, w1) + b1
        u = _gelu(u)
        y = torch.einsum('bdf,fs->bds', u, w2) + b2
        return (lambda x, *d: x.permute(*d))(y, 0, 2, 1)
    x = A_x
    h = x + _A_ref(_layernorm(x, axis=-1), A_mem0, A_Wq, A_Wk, A_Wv, A_Wo, A_seg_len)
    h2 = h + _B_ref(_layernorm(h, axis=-1), B_w1, B_b1, B_w2, B_b2)
    return h2
```

```python
import numpy as np
class Asm:
    def __init__(s):
        s.L = []; s.ds = []; s.vm = []; s.uid = 0
    def __call__(s, txt):
        for l in txt.strip("\n").split("\n"):
            s.L.append("  " + l.strip() if not l.strip().endswith(":") else l.strip())
    def d(s, txt, tag=None):
        s(txt); s.ds.append(tag)
    def m(s, txt, tag=None):
        s(txt); s.vm.append(tag)
    def _n(s, q, tags):
        last = max(i for i, t in enumerate(q) if t in tags)
        return len(q) - 1 - last
    def wd(s, *tags):
        n = s._n(s.ds, tags); s(f"s_waitcnt lgkmcnt({min(n,15)})")
    def wm(s, *tags):
        n = s._n(s.vm, tags); assert n < 64; s(f"s_waitcnt vmcnt({n})")
    def nop(s, n):
        while n > 0:
            k = min(n, 16); s(f"s_nop {k-1}"); n -= k
    def lab(s, p):
        s.uid += 1; return f"{p}_{s.uid}"
    def srd(s, r, b, size):
        s(f"s_mov_b32 s{r}, s{b}\ns_mov_b32 s{r+1}, s{b+1}\ns_mov_b32 s{r+2}, {size}\ns_mov_b32 s{r+3}, 0x00020000")
    def text(s): return "\n".join(s.L) + "\n"
def f2u(x): return hex(int(np.float32(x).view(np.uint32)))
def R(k, a, n=4): return f"{k}[{a}:{a+n-1}]"
def kdesc(name, vgpr=512, acc=256, sgpr=102):
    return f""".amdhsa_kernel {name}
  .amdhsa_next_free_vgpr {vgpr}
  .amdhsa_next_free_sgpr {sgpr}
  .amdhsa_accum_offset {acc}
  .amdhsa_group_segment_fixed_size 0
  .amdhsa_kernarg_size 120
  .amdhsa_user_sgpr_count 2
  .amdhsa_user_sgpr_kernarg_segment_ptr 1
  .amdhsa_system_sgpr_workgroup_id_x 1
.end_amdhsa_kernel
"""
XN=0; QF=0x400000; KF=0x1400000; VF=0x2400000; KM=0x3400000; VM=0x3C00000; HA=0x4400000; HB=0x4480000
TS=0x4490000; OF=0x4800000; HH=0x5800000; HN=0x5C00000; UU=0x6000000; WSZ=0x10000000
```

```python
from asmlib import *
PFD = 1
DS = 3
DA, DB, DN, MODE, KVF = 0, 0, 8, 0, ''
LM, LS, LO = 147456, 156672, 161792
def wreg(name, t):
    if name == "q0": return R("a", 8*t, 8)
    if name == "q1": return R("a", 72+8*t, 8)
    if name == "k0": return R("a", 144+8*t, 8)
    if name == "v0": return R("a", 216+8*t, 8) if t < 5 else R("v", 224+8*(t-5), 8)
def wsub(name, t, q):
    base = {"q0": ("a", 8*t), "q1": ("a", 72+8*t), "k0": ("a", 144+8*t),
            "v0": ("a", 216+8*t) if t < 5 else ("v", 224+8*(t-5)),
            "k1": ("v", 152+8*t), "v1": ("v", 80+8*t), "o0": ("v", 8+8*t), "o1": ("v", 152+8*t)}[name]
    return R(base[0], base[1]+2*q, 2)
def gen_chain(A, prof=False, flags=False):
    A(f"""
    s_lshr_b32 s20, s2, 3
    v_lshrrev_b32 v1, 6, v0
    v_and_b32 v0, 63, v0
    s_load_dwordx4 s[40:43], s[0:1], 16
    s_load_dwordx4 s[44:47], s[0:1], 32
    s_load_dwordx2 s[48:49], s[0:1], 8
    s_load_dwordx4 s[52:55], s[0:1], 104
    v_readfirstlane_b32 s21, v1
    s_getreg_b32 s24, hwreg(HW_REG_XCC_ID, 0, 4)
    s_waitcnt lgkmcnt(0)""")
    A.srd(8, 54, WSZ); A.srd(16, 52, 256)
    A(f"""
    v_lshrrev_b32 v1, 3, v0
    v_lshlrev_b32 v1, 13, v1
    v_bfe_u32 v2, v0, 1, 2
    v_bfe_u32 v3, v0, 4, 1
    v_xor_b32 v2, v2, v3
    v_lshlrev_b32 v2, 5, v2
    v_and_b32 v3, 1, v0
    v_lshlrev_b32 v3, 4, v3
    v_add3_u32 v1, v1, v2, v3
    v_xor_b32 v2, 64, v1
    v_lshlrev_b32 v3, 4, v0
    s_lshl_b32 s25, s21, 10
    s_lshl_b32 s26, s21, 16
    s_lshl_b32 s27, s20, 8
    s_add_u32 s26, s26, s27
    s_mul_i32 s27, s20, 147456
    s_add_u32 s27, s27, s25""")
    chunks = [("k1",42,1),("v1",44,1),("k0",42,0),("v0",44,0),("q0",40,0),("q1",40,1),("o0",46,0),("o1",46,1)]
    def issue(c):
        nm, b, j = chunks[c]
        A.srd(12, b, 4718592)
        for ii in range(18):
            A(f"s_add_u32 m0, s25, {(c&1)*73728 + ii*4096}")
            if nm[0] == "o":
                A(f"s_add_u32 s28, s27, {j*73728 + ii*4096}")
                A.m(f"buffer_load_dwordx4 v3, s[12:15], s28 offen lds", f"c{c}")
            else:
                A(f"s_add_u32 s28, s26, {ii*4*65536 + j*128}")
                A.m(f"buffer_load_dwordx4 v{1+(ii&1)}, s[12:15], s28 offen lds", f"c{c}")
    issue(0); issue(1)
    A(f"""
    v_mov_b32 v8, 0
    v_mov_b32 v9, 0
    v_mov_b32 v10, 0
    v_mov_b32 v11, 0
    v_lshrrev_b32 v4, 3, v0
    v_lshlrev_b32 v4, 12, v4
    v_and_b32 v5, 7, v0
    v_lshl_add_u32 v4, v5, 4, v4
    s_lshl_b32 s28, s20, 7
    s_add_u32 s28, s28, {HA}""")
    for i in range(9):
        A(f"s_add_u32 s29, s28, {i*32768}")
        A.m(f"buffer_store_dwordx4 v[8:11], v4, s[8:11], s29 offen sc1")
    A(f"s_mov_b32 s29, {HB}")
    for i in range(9):
        A.m(f"buffer_store_dwordx4 v[8:11], v3, s[8:11], s29 offen offset:{(i%4)*1024} sc1")
        if i % 4 == 3: A(f"s_add_u32 s29, s29, 4096")
    A(f"""
    v_bfe_u32 v6, v0, 4, 1
    v_bfe_u32 v7, v0, 5, 1
    v_bfe_u32 v8, v0, 2, 2
    v_lshlrev_b32 v4, 5, v6
    v_lshl_add_u32 v4, v7, 3, v4
    v_add_u32 v4, v4, v8
    v_lshlrev_b32 v4, 7, v4
    v_lshrrev_b32 v9, 1, v8
    v_lshl_add_u32 v10, v6, 1, v9
    v_xor_b32 v10, s21, v10
    v_lshl_add_u32 v4, v10, 5, v4
    v_and_b32 v10, 3, v0
    v_lshl_add_u32 v4, v10, 3, v4
    v_lshlrev_b32 v5, 4, v7
    v_lshl_add_u32 v5, v6, 2, v5
    v_lshl_add_u32 v5, v9, 3, v5
    v_and_b32 v8, 1, v8
    v_add_u32 v5, v5, v8
    v_mul_u32_u24 v5, 1152, v5
    v_lshl_add_u32 v5, v10, 3, v5
    s_mul_i32 s28, s21, 288
    v_add_u32 v5, s28, v5""")
    for c in range(8):
        nm = chunks[c][0]
        if c == 0:
            A("s_waitcnt vmcnt(0)\ns_barrier")
            lb = A.lab("NOSIG")
            A(f"""s_cmp_lg_u32 s21, 0
            s_cbranch_scc1 {lb}
            s_lshl_b32 s28, 1, s24
            v_mov_b32 v6, s28
            v_mov_b32 v7, 0
            s_mov_b64 exec, 1
            buffer_atomic_or v6, v7, s[16:19], 0 offen offset:4 sc0
            s_waitcnt vmcnt(0)
            v_mov_b32 v6, 1
            buffer_atomic_add v6, v7, s[16:19], 0 offen
            s_waitcnt vmcnt(0)
            s_mov_b64 exec, -1
            {lb}:""")
        else:
            A.wm(f"c{c}"); A("s_barrier")
        if c == 7:
            A(f"s_mul_i32 s28, s21, 18432\nv_add_u32 v6, s28, v3")
            for t in range(18): A(f"ds_write_b128 v6, {R('v',152+4*t)} offset:{t*1024}")
            A("s_waitcnt lgkmcnt(0)")
        if nm[0] == "o":
            A(f"v_add_u32 v6, {(c&1)*73728}, v5")
            for q in range(4):
                A(f"ds_read_b64_tr_b16 {wsub(nm,8,q)}, v6 offset:{(32*(q>>1)+2*(q&1))*1152+32*8}")
            A(f"""v_bfe_u32 v7, v0, 5, 1
            v_mul_u32_u24 v7, {8*1152}, v7
            v_sub_u32 v6, v6, v7
            v_bfe_u32 v7, v0, 3, 1
            v_mul_u32_u24 v7, {8*1152-32}, v7
            v_sub_u32 v6, v6, v7""")
            for T in range(8):
                for q in range(4):
                    A(f"ds_read_b64_tr_b16 {wsub(nm,T,q)}, v6 offset:{(32*(T&1)+16*(q>>1)+2*(q&1))*1152+64*(T>>1)}")
        else:
            A(f"v_add_u32 v6, {(c&1)*73728}, v4\nv_add_u32 v7, {(c&1)*73728+32768}, v4")
            for t in range(9):
                for q in range(4):
                    o = (64*t+16*(q>>1)+4*(q&1))*128
                    A(f"ds_read_b64_tr_b16 {wsub(nm,t,q)}, v{6 if t<4 else 7} offset:{o if t<4 else o-32768}")
        A("s_waitcnt lgkmcnt(0)")
        if c < 6:
            A("s_barrier"); issue(c+2)
    A(f"s_barrier\ns_mul_i32 s28, s21, 18432\ns_add_u32 s28, s28, 73728\nv_add_u32 v6, s28, v3")
    for t in range(18): A(f"ds_write_b128 v6, {R('v',80+4*t)} offset:{t*1024}")
    A("s_waitcnt lgkmcnt(0)")
    for i in range(72): A(f"v_mov_b32 v{80+i}, v{8+i}")
    A.srd(12, 48, 9216)
    A(f"s_lshl_b32 s28, s21, 6\nv_add_u32 v6, s28, v0")
    for i in range(3):
        A(f"v_add_u32 v7, {i*256}, v6\nv_min_u32 v7, 575, v7\nv_lshlrev_b32 v8, 1, v7\nv_lshlrev_b32 v7, 4, v7\nv_add_u32 v7, {LM}, v7")
        for r in range(8):
            A(f"buffer_load_ushort v{20+r}, v8, s[12:15], 0 offen offset:{(r%3)*1152}")
            if r % 3 == 2: A("v_add_u32 v8, 3456, v8")
        A("s_waitcnt vmcnt(0)")
        for r in range(4): A(f"v_lshl_or_b32 v{12+r}, v{21+2*r}, 16, v{20+2*r}")
        A("ds_write_b128 v7, v[12:15]\ns_waitcnt lgkmcnt(0)")
    A(f"""
    v_mov_b32 v14, v0
    v_and_b32 v15, 15, v14
    v_lshrrev_b32 v16, 4, v14
    v_lshlrev_b32 v17, 4, v14
    v_add_u32 v0, {LS}, v17
    s_mul_i32 s28, s21, 18432
    v_add_u32 v1, s28, v17
    v_bfe_u32 v18, v14, 3, 1
    v_lshlrev_b32 v2, 2, v18
    v_bfe_u32 v18, v14, 2, 1
    v_add_u32 v2, v2, v18
    v_bfe_u32 v18, v14, 1, 1
    v_lshl_add_u32 v2, v18, 1, v2
    v_lshl_add_u32 v2, v16, 3, v2
    v_lshlrev_b32 v2, 4, v2
    v_and_b32 v18, 1, v14
    v_lshl_add_u32 v2, v18, 3, v2
    v_add_u32 v2, {LM}, v2
    s_mul_i32 s28, s21, 1280
    v_add_u32 v3, s28, v0
    v_and_b32 v4, 31, v14
    v_lshlrev_b32 v4, 3, v4
    v_add_u32 v4, {LS+1024}, v4
    v_add_u32 v5, s28, v4
    v_and_b32 v18, 1, v16
    v_lshrrev_b32 v19, 1, v16
    v_lshlrev_b32 v6, 4, v15
    v_lshl_add_u32 v6, v18, 3, v6
    v_lshl_add_u32 v6, v19, 7, v6
    s_lshl_b32 s28, s21, 8
    s_add_u32 s28, s28, {LO}
    v_add_u32 v6, s28, v6
    s_mul_i32 s29, s20, 3
    s_add_u32 s29, s29, s21
    s_lshl_b32 s30, s29, 7
    s_add_u32 s30, s30, {HB}
    s_sub_u32 s30, s30, s28
    s_lshl_b32 s31, s29, 12
    s_add_u32 s31, s31, {HA-LS}
    v_lshl_add_u32 v7, v18, 1, v19
    v_lshl_add_u32 v7, v7, 4, v15
    s_mul_i32 s28, s21, 144
    v_add_u32 v7, s28, v7
    s_add_u32 s28, s28, 128
    v_add_u32 v8, s28, v15
    v_lshrrev_b32 v20, 3, v7
    v_and_b32 v7, 7, v7
    v_lshlrev_b32 v7, 4, v7
    v_lshl_add_u32 v7, v20, 12, v7
    v_lshrrev_b32 v20, 3, v8
    v_and_b32 v8, 7, v8
    v_lshlrev_b32 v8, 4, v8
    v_lshl_add_u32 v8, v20, 12, v8
    v_lshl_add_u32 v8, v18, 3, v8
    v_lshl_add_u32 v8, v19, 2, v8
    s_lshl_b32 s32, s20, 7
    s_add_u32 s32, s32, {HA}
    s_add_u32 s33, s32, 32768
    s_mul_i32 s28, s21, 2304
    s_add_u32 s28, s28, {LM}
    v_add_u32 v9, s28, v17
    s_add_u32 s28, s28, 2048
    v_and_b32 v10, 31, v14
    v_lshl_add_u32 v10, v10, 3, s28
    s_mov_b32 s34, {HB-LM}
    s_mov_b32 s60, 0xff00ff00
    s_mov_b32 s61, 0xff00ff00
    s_mov_b32 s62, 0x00ff00ff
    s_mov_b32 s63, 0x00ff00ff
    s_mov_b32 s64, -1
    s_mov_b32 s65, 0
    v_mov_b32 v11, 0x4444
    v_mov_b32 v18, 0xeeee
    v_cndmask_b32 v11, v11, v18, s[60:61]
    v_and_b32 v18, 7, v15
    v_and_b32 v19, 1, v16
    v_lshlrev_b32 v19, 2, v19
    v_sub_u32 v18, v18, v19
    v_mov_b32 v12, 0
    v_mov_b32 v13, 0
    v_mov_b32 v20, 0x3f80
    v_mov_b32 v21, 0x3f800000
    v_cmp_eq_u32 vcc, 0, v18
    s_nop 1
    v_cndmask_b32 v12, v12, v20, vcc
    v_cmp_eq_u32 vcc, 1, v18
    s_nop 1
    v_cndmask_b32 v12, v12, v21, vcc
    v_cmp_eq_u32 vcc, 2, v18
    s_nop 1
    v_cndmask_b32 v13, v13, v20, vcc
    v_cmp_eq_u32 vcc, 3, v18
    s_nop 1
    v_cndmask_b32 v13, v13, v21, vcc
    v_and_b32 v18, 7, v15
    v_lshrrev_b32 v18, 1, v18
    v_cmp_eq_u32 s[66:67], 0, v18
    v_cmp_eq_u32 s[68:69], 1, v18
    v_cmp_eq_u32 s[70:71], 2, v18
    v_cmp_eq_u32 s[72:73], 3, v18
    s_mov_b32 s74, 0xaaaaaaaa
    s_mov_b32 s75, 0xaaaaaaaa
    s_lshl_b32 s35, s20, 13
    s_lshl_b32 s28, s21, 11
    s_add_u32 s36, s35, s28
    s_add_u32 s37, s36, {VF-LS}
    s_add_u32 s36, s36, {KF-LS}
    s_and_b32 s35, s20, 7
    s_lshl_b32 s35, s35, 2
    s_add_u32 s35, s35, s21
    s_lshl_b32 s35, s35, 13
    s_add_u32 s35, s35, {KF+PFD*262144-8*LS}
    s_mov_b32 m0, 163840
    s_lshl_b32 s38, s20, 12
    s_lshl_b32 s28, s21, 10
    s_add_u32 s38, s38, s28
    s_add_u32 s39, s38, {VM-LS}
    s_add_u32 s38, s38, {KM-LS}
    s_mov_b32 s76, {f2u(128**-0.5*1.4426950408889634)}
    s_mov_b32 s77, 0x3f803f80
    s_mov_b32 s22, 0
    s_mov_b32 s23, 1
    s_cmp_lt_u32 s20, 24
    s_cselect_b32 s78, 1, 0
    s_cmp_lt_u32 s21, 3
    s_cselect_b32 s78, s78, 0
    v_mov_b32 v20, 0
    s_mov_b32 s79, 0""")
    lw = A.lab("HS")
    A(f"""{lw}:
    buffer_load_dwordx2 v[18:19], v20, s[16:19], 0 offen sc1
    s_add_u32 s79, s79, 1
    s_cmp_gt_u32 s79, 0x100000
    s_cbranch_scc1 CH_END
    s_waitcnt vmcnt(0)
    v_readfirstlane_b32 s28, v18
    v_readfirstlane_b32 s29, v19
    s_cmp_lt_u32 s28, 32
    s_cbranch_scc1 {lw}
    s_bcnt1_i32_b32 s29, s29
    s_cmp_eq_u32 s29, 1
    s_cbranch_scc0 CH_SLOW""")
    if prof is not None: A("s_memrealtime s[94:95]")
    loop(A, "F", "", prof)
    A("CH_SLOW:")
    loop(A, "S", "sc1", False)
    A("CH_END:")

def loop(A, X, stf, prof):
    SM = "v_smfmac_f32_16x16x64_bf16"
    M32 = "v_mfma_f32_16x16x32_bf16"; M16 = "v_mfma_f32_16x16x16_bf16"
    DPP = "row_ror:8 row_mask:0xf bank_mask:0xf"
    def stamp(i):
        if prof: A(f"s_memtime s[{80+2*i}:{81+2*i}]")
    def ldA(t, slot, tag):
        A.d(f"ds_read_b64_tr_b16 v[{slot}:{slot+1}], v2 offset:{t*1024}", tag)
        A.d(f"ds_read_b64_tr_b16 v[{slot+2}:{slot+3}], v2 offset:{t*1024+512}", tag)
    def ldW(t, b, tag):
        A.d(f"ds_read_b128 {R('v',22+8*b)}, v1 offset:{t*2048}", tag)
        A.d(f"ds_read_b128 {R('v',26+8*b)}, v1 offset:{t*2048+1024}", tag)
    def pre():
        for i in range(50, 74): A(f"v_mov_b32 v{i}, 0")
        ldW(0, 0, "k0"); ldW(1, 1, "k1")
    pre()
    A.m(f"buffer_load_dwordx4 v[14:17], v0, s[8:11], s36 offen", "kx")
    A.m(f"buffer_load_dwordx4 v[18:21], v0, s[8:11], s36 offen offset:1024", "kx")
    A(f"s_waitcnt lgkmcnt(0)\nSTEP{X}:\ns_barrier")
    stamp(0)
    A.ds = []; A.vm = ["kx"]
    for t in range(3): ldA(t, 38+4*t, f"a{t}")
    for t in range(9):
        sl = R("v", 38+4*(t%3)); u = t-1
        A.wd(f"a{t}")
        A(f"{SM} v[50:53], {sl}, {wreg('q0',t)}, v11")
        if 1 <= t <= 7: ldW(t+1, u&1, f"k{t+1}")
        if t == 8: ldW(0, 1, "p0")
        A(f"{SM} v[54:57], {sl}, {wreg('q1',t)}, v11")
        if 1 <= t <= 6: ldA(t+2, 38+4*(u%3), f"a{t+2}")
        if t >= 7: ldA(t-7, 38+4*(u%3), f"p{t-7}")
        A(f"{SM} v[58:61], {sl}, {wreg('k0',t)}, v11")
        if t == 7: A("v_add_u32 v1, 73728, v1")
        if t == 3: A("s_waitcnt vmcnt(2)")
        if t >= 2: A.wd(f"k{t}")
        A(f"{SM} v[62:65], {sl}, {R('v',22+8*(t&1),8)}, v11")
        if 3 <= t <= 6: A(f"v_mov_b32 v{66+2*(t-3)}, 0\nv_mov_b32 v{67+2*(t-3)}, 0")
    ldW(1, 0, "p1")
    stamp(1)
    def pair(t):
        sl = R("v", 38+4*(t&1))
        A.wd(f"p{t}")
        A(f"{SM} v[66:69], {sl}, {wreg('v0',t)}, v11")
        A(f"{SM} v[70:73], {sl}, {R('v',22+8*((t+1)&1),8)}, v11")
    def pld(t):
        if t < 9:
            ldA(t, 38+4*(t&1), f"p{t}"); ldW(t, (t+1)&1, f"p{t}")
        if t == 8: A("v_subrev_u32 v1, 73728, v1")
    pair(0); pld(2); A.nop(2)
    pk = [74, 76, 78, 46]
    for i in range(4):
        A(f"v_cvt_pk_bf16_f32 v{pk[i]}, v{50+4*i}, v{51+4*i}\nv_cvt_pk_bf16_f32 v{pk[i]+1}, v{52+4*i}, v{53+4*i}")
    for i in range(4):
        A(f"{M16} {R('v',50+4*i)}, {R('v',pk[i],2)}, v[12:13], 0")
    pair(1); pld(3); A.nop(1)
    pk = [74, 76, 46, 48]
    for i in range(4):
        A(f"v_cvt_pk_bf16_f32 v{pk[i]}, v{50+4*i}, v{51+4*i}\nv_cvt_pk_bf16_f32 v{pk[i]+1}, v{52+4*i}, v{53+4*i}")
    A.wm("kx")
    A(f"{M32} v[54:57], v[14:17], v[74:77], 0")
    A(f"{M32} v[58:61], v[18:21], v[74:77], 0")
    A(f"{M32} v[50:53], v[46:49], v[74:77], 0")
    A.m(f"buffer_load_dwordx4 v[14:17], v0, s[8:11], s37 offen", "vx")
    A.m(f"buffer_load_dwordx4 v[18:21], v0, s[8:11], s37 offen offset:1024", "vx")
    pair(2); pld(4)
    for r in range(4): A(f"v_cndmask_b32 v{62+r}, v{54+r}, v{58+r}, s[60:61]")
    for r in range(2): A(f"v_cndmask_b32 v{78+r}, v{50+r}, v{52+r}, s[60:61]")
    A.d("ds_write_b128 v3, v[62:65]", "sw"); A.d("ds_write_b64 v5, v[78:79]", "sw")
    A.m(f"buffer_store_dwordx4 v[46:49], v0, s[8:11], s38 offen {KVF}")
    pair(3); A.wd("sw"); A("s_barrier")
    stamp(2)
    mr = [74, 76, 78, 46]
    for i in range(4):
        A.d(f"ds_read_b128 {R('v',50+4*i)}, v0 offset:{i*1280}", f"s{i}")
        A.d(f"ds_read_b64 {R('v',mr[i],2)}, v4 offset:{i*1280}", f"s{i}")
    pld(5); pair(4); pld(6)
    A.wd("s1")
    for r in range(4): A(f"v_add_f32 v{50+r}, v{50+r}, v{54+r}")
    for r in range(2): A(f"v_add_f32 v{74+r}, v{74+r}, v{76+r}")
    A.wd("s3")
    for r in range(4): A(f"v_add_f32 v{58+r}, v{58+r}, v{62+r}")
    for r in range(2): A(f"v_add_f32 v{78+r}, v{78+r}, v{46+r}")
    for r in range(4): A(f"v_add_f32 v{50+r}, v{50+r}, v{58+r}")
    for r in range(2): A(f"v_add_f32 v{74+r}, v{74+r}, v{78+r}")
    A("v_max3_f32 v54, v50, v51, v52\nv_max3_f32 v54, v54, v53, v74\nv_max_f32 v54, v54, v75")
    pair(5)
    A(f"v_max_f32_dpp v54, v54, v54 {DPP}\nv_mov_b32 v55, v54")
    pld(7)
    A("v_permlane16_swap_b32 v54, v55\nv_max_f32 v54, v54, v55\nv_mov_b32 v55, v54")
    pair(6)
    A("v_permlane32_swap_b32 v54, v55\nv_max_f32 v54, v54, v55\nv_mul_f32 v54, s76, v54")
    pld(8)
    for r in (50, 51, 52, 53, 74, 75): A(f"v_fma_f32 v{r}, v{r}, s76, -v54")
    pair(7)
    for r in (50, 51, 52, 53, 74, 75): A(f"v_exp_f32 v{r}, v{r}")
    pair(8)
    A("v_cvt_pk_bf16_f32 v54, v50, v51\nv_cvt_pk_bf16_f32 v55, v52, v53\nv_cvt_pk_bf16_f32 v58, v74, v75")
    for r in range(4): A(f"v_mov_b32 v{60+r}, s77")
    A(f"v_mov_b32_dpp v56, v54 {DPP}\nv_mov_b32_dpp v57, v55 {DPP}\nv_mov_b32_dpp v59, v58 {DPP}")
    A("v_cndmask_b32 v64, 0, v60, s[64:65]\nv_cndmask_b32 v65, 0, v60, s[64:65]")
    A.wm("vx")
    A(f"{M32} v[30:33], v[60:63], v[54:57], 0")
    A("v_cvt_pk_bf16_f32 v76, v66, v67\nv_cvt_pk_bf16_f32 v77, v68, v69")
    A(f"{M32} v[22:25], v[14:17], v[54:57], 0")
    A("v_cvt_pk_bf16_f32 v78, v70, v71\nv_cvt_pk_bf16_f32 v79, v72, v73")
    A(f"{M32} v[26:29], v[18:21], v[54:57], 0")
    A(f"{M16} v[30:33], v[64:65], v[58:59], v[30:33]")
    A(f"{M16} v[22:25], v[76:77], v[58:59], v[22:25]")
    A(f"{M16} v[26:29], v[78:79], v[58:59], v[26:29]")
    A.m(f"buffer_store_dwordx4 v[76:79], v0, s[8:11], s39 offen {KVF}")
    A(f"""s_cmp_eq_u32 s22, 63
    s_cbranch_scc1 CH_END
    v_lshrrev_b32 v67, 1, v0
    v_and_b32 v67, 0x180, v67
    v_and_b32 v66, 0xfffffc7f, v0
    v_or_b32 v67, v66, v67
    v_rcp_f32 v30, v30
    s_mov_b64 exec, s[62:63]""")
    for r in range(8): A(f"v_mul_f32 v{22+r}, v{22+r}, v30")
    for r in range(4): A(f"v_cvt_pk_bf16_f32 v{34+r}, v{22+2*r}, v{23+2*r}")
    A.d("ds_write_b64 v6, v[34:35]"); A.d("ds_write_b64 v6, v[36:37] offset:1024", "ow")
    A("s_mov_b64 exec, -1")
    for i in range(38, 48): A(f"v_mov_b32 v{i}, 0")
    A.wd("ow"); A("s_barrier")
    stamp(3)
    A.d("ds_read_b128 v[30:33], v0 offset:5120", "o4"); A.d("ds_read_b128 v[34:37], v0 offset:6144", "o5")
    for k in range(4): A.d(f"ds_read_b128 {R('v',14+4*k)}, v67 offset:{5120+512*k}", f"o{k}")
    for i in range(48, 58): A(f"v_mov_b32 v{i}, 0")
    def wo(p, k): A(f"{SM} {R('v',38+4*p)}, {R('v',14+4*k)}, {R('v',80+72*(k>>1)+16*p+8*(k&1),8)}, v11")
    def quad(b, o):
        out = [f"v_cvt_pk_bf16_f32 v{o+r}, v{b+2*r}, v{b+2*r+1}" for r in range(4)]
        out += [f"v_and_or_b32 v{o+r}, v{o+r}, -2, s23" for r in range(4)]
        return out + ["s_nop 0", f"v_permlane16_swap_b32 v{o}, v{o+2}", f"v_permlane16_swap_b32 v{o+1}, v{o+3}"]
    t8 = ["s_nop 0", "s_nop 0", "s_nop 0"] + """v_permlane32_swap_b32 v54, v56
    v_permlane32_swap_b32 v55, v57
    v_add_f32 v54, v54, v56
    v_add_f32 v55, v55, v57
    v_cvt_pk_bf16_f32 v66, v54, v55
    v_and_or_b32 v66, v66, -2, s23""".split("\n") + [f"buffer_store_dword v66, v8, s[8:11], s32 offen {stf}"]
    A("s_nop 0")
    for t in range(2):
        A.wd(f"o{4+t}"); A(f"{SM} v[54:57], {R('v',30+4*t)}, {R('v',80+72*t+64,8)}, v11")
    for k in range(4):
        A.wd(f"o{k}"); wo(0, k); A(t8.pop(0))
        if k >= 2: A(t8.pop(0))
        wo(1, k); A(t8.pop(0))
    assert not t8
    q0 = ["s_nop 2", "s_nop 2"] + quad(38, 58) + [f"buffer_store_dwordx4 v[58:61], v7, s[8:11], s32 offen {stf}"]
    for k in range(4):
        for p in (2, 3):
            wo(p, k)
            for _ in range(2 if k else 1):
                if q0: A(q0.pop(0))
    assert not q0
    A.nop(5)
    for l in quad(46, 62): A(l)
    A(f"buffer_store_dwordx4 v[62:65], v7, s[8:11], s33 offen {stf}")
    stamp(4)
    A(f"""s_add_u32 s36, s36, {0 if MODE == 3 else 262144}
    s_add_u32 s37, s37, {0 if MODE == 3 else 262144}
    s_add_u32 s38, s38, {0 if MODE == 2 else 131072}
    s_add_u32 s39, s39, {0 if MODE == 2 else 131072}
    s_add_u32 s22, s22, 1
    s_add_u32 s35, s35, {0 if MODE == 3 else 262144}
    s_mov_b32 s79, 0
    s_cmp_eq_u32 s78, 0
    s_cbranch_scc1 NORED{X}
    v_mov_b32 v34, 0x3f80
    v_mov_b32 v35, 0x3f800000
    v_cndmask_b32 v34, v34, v35, s[74:75]
    v_cndmask_b32 v30, 0, v34, s[66:67]
    v_cndmask_b32 v31, 0, v34, s[68:69]
    v_cndmask_b32 v32, 0, v34, s[70:71]
    v_cndmask_b32 v33, 0, v34, s[72:73]""")
    TO = f"s_add_u32 s79, s79, 1\ns_cmp_gt_u32 s79, 0x100000\ns_cbranch_scc1 CH_END"
    def issA(b):
        for i in range(4): A(f"buffer_load_dwordx4 {R('v',b+4*i)}, v0, s[8:11], s31 offen offset:{i*1024} sc1")
    def chkA(b):
        for i in range(4):
            A(f"s_waitcnt vmcnt({7-i})")
            A(f"{M32} v[34:37], v[30:33], {R('v',b+4*i)}, {'0' if i==0 else 'v[34:37]'}")
            for r in range(4):
                A(f"v_xor_b32 v14, s23, v{b}" if i+r == 0 else f"v_bitop3_b32 v14, v14, v{b+4*i+r}, s23 bitop3:0xf6")
        A(f"v_and_b32 v14, 1, v14\nv_cmp_ne_u32 vcc, 0, v14\ns_nop 0\ns_cbranch_vccz GOTA{X}")
    if DA: A(f"s_sleep {DA}")
    issA(38); A(f"s_sleep {DS}"); issA(54)
    A(f"POLLA{X}:")
    chkA(38); issA(38); chkA(54); issA(54); A(TO); A(f"s_branch POLLA{X}\nGOTA{X}:")
    for r in range(4): A(f"v_add_f32_dpp v{76+r}, v{34+r}, v{34+r} {DPP}")
    A(f"""v_cvt_pk_bf16_f32 v79, v78, v79
    v_cvt_pk_bf16_f32 v78, v76, v77
    v_and_or_b32 v78, v78, -2, s23
    s_mov_b64 exec, 0x00ff00ff
    buffer_store_dwordx2 v[78:79], v6, s[8:11], s30 offen {stf}
    s_mov_b64 exec, -1
    s_branch RED{X}
    NORED{X}:
    s_cmp_lt_u32 s20, 24
    s_cbranch_scc1 NOPF{X}
    v_lshlrev_b32 v38, 3, v0
    s_add_u32 s28, s35, {VF-KF}
    buffer_load_dword v38, s[8:11], s35 offen lds
    buffer_load_dword v38, s[8:11], s28 offen lds
    NOPF{X}:
    s_sleep {DN}
    RED{X}:""")
    stamp(5)
    ldW(0, 0, "k0"); ldW(1, 1, "k1")
    if DB: A(f"s_sleep {DB}")
    def issB(b, c):
        A(f"""buffer_load_dwordx4 {R('v',b)}, v9, s[8:11], s34 offen sc1
        buffer_load_dwordx4 {R('v',b+4)}, v9, s[8:11], s34 offen offset:1024 sc1
        buffer_load_dwordx2 {R('v',c,2)}, v10, s[8:11], s34 offen sc1""")
    def chkB(b, c, lab):
        A(f"s_waitcnt vmcnt(3)\nv_xor_b32 v38, s23, v{b}")
        for r in (b+2, b+4, b+6, c): A(f"v_bitop3_b32 v38, v38, v{r}, s23 bitop3:0xf6")
        A(f"v_and_b32 v38, 1, v38\nv_cmp_ne_u32 vcc, 0, v38\ns_nop 0\ns_cbranch_vccz {lab}")
    def wrB(b, c):
        A(f"ds_write_b128 v9, {R('v',b)}\nds_write_b128 v9, {R('v',b+4)} offset:1024\nds_write_b64 v10, {R('v',c,2)}")
    issB(14, 74)
    A("s_waitcnt vmcnt(3)\ns_mov_b32 s79, 0")
    for i in range(50, 66): A(f"v_mov_b32 v{i}, 0")
    if DS > 1: A(f"s_sleep {DS-1}")
    issB(66, 76)
    A(f"POLLB{X}:")
    chkB(14, 74, f"GOTB1{X}"); issB(14, 74); chkB(66, 76, f"GOTB2{X}"); issB(66, 76); A(TO); A(f"s_branch POLLB{X}\nGOTB1{X}:")
    wrB(14, 74); A(f"s_branch GOTB{X}\nGOTB2{X}:"); wrB(66, 76)
    A(f"""GOTB{X}:
    s_xor_b32 s23, s23, 1
    s_waitcnt lgkmcnt(0)
    buffer_load_dwordx4 v[14:17], v0, s[8:11], s36 offen
    buffer_load_dwordx4 v[18:21], v0, s[8:11], s36 offen offset:1024""")
    if prof:
        stamp(6)
        lb = A.lab("NP")
        A(f"s_waitcnt lgkmcnt(0)\ns_cmp_lg_u32 s22, 40\ns_cbranch_scc1 {lb}")
        for i in range(7): A(f"v_mov_b32 v{38+i}, s{80+2*i}")
        A(f"""s_lshl_b32 s28, s20, 2
        s_add_u32 s28, s28, s21
        s_lshl_b32 s28, s28, 5
        s_add_u32 s28, s28, {TS}
        v_mov_b32 v46, 0
        buffer_store_dwordx4 v[38:41], v46, s[8:11], s28 offen
        buffer_store_dwordx4 v[42:45], v46, s[8:11], s28 offen offset:16
        s_waitcnt vmcnt(0)
        {lb}:""")
    A(f"s_branch STEP{X}")
```

```python
from asmlib import *
M32 = "v_mfma_f32_16x16x32_bf16"
def lin(A, dst, lane, terms, tmp, add=None):
    first = True
    for sh, bits, mult in terms:
        t = dst if first else tmp
        A(f"v_bfe_u32 v{t}, v{lane}, {sh}, {bits}")
        if mult != 1: A(f"v_mul_u32_u24 v{t}, {mult}, v{t}")
        if not first: A(f"v_add_u32 v{dst}, v{dst}, v{tmp}")
        first = False
    if add is not None: A(f"v_add_u32 v{dst}, {add}, v{dst}")
class Op:
    def __init__(s, kind, srd, soff, pitch, nt, wt, wsel, flags=""):
        s.kind, s.srd, s.soff, s.pitch, s.nt, s.wt, s.wsel, s.flags = kind, srd, soff, pitch, nt, wt, wsel, flags
        s.SB = nt*2048; s.nd = nt//2; s.RB = nt*32
        s.adv = 2048 if kind == "fr" else 64*pitch
class Gemm:
    def __init__(s, A, ops, NS, vb, lane, sw, st, ldsbase=0):
        s.A, s.ops, s.NS, s.lane, s.sw, s.st = A, ops, NS, lane, sw, st
        off = ldsbase; s.ldsbase = ldsbase
        for o in ops: o.lo = off; off += o.SB
        s.SB = off - ldsbase
        for o in ops:
            o.vo = vb; vb += o.nd
        for o in ops:
            o.va = vb; vb += 1 if o.kind == "fr" else len(o.wt)
        vb += vb & 1
        s.nfr = sum(len(o.wt) for o in ops)
        s.fb = vb; vb += 8*s.nfr
        s.t0 = vb; s.t1 = vb+1; s.vend = vb+2
        s.ndma = sum(o.nd for o in ops)
    def setup_load(s):
        A, L, t0, t1, sw, st = s.A, s.lane, s.t0, s.t1, s.sw, s.st
        for o in s.ops:
            for j in range(o.nd):
                v = o.vo+j
                if o.kind == "fr":
                    A(f"s_mul_i32 s{st}, s{sw}, {o.nd}\ns_add_u32 s{st}, s{st}, {j}\ns_and_b32 s{st+1}, s{st}, 1\ns_lshr_b32 s{st}, s{st}, 1")
                    A(f"s_mul_i32 s{st}, s{st}, {o.pitch}\ns_lshl_b32 s{st+1}, s{st+1}, 10\ns_add_u32 s{st}, s{st}, s{st+1}")
                    A(f"v_lshl_add_u32 v{v}, v{L}, 4, s{st}")
                else:
                    cpr = o.RB//16
                    A(f"v_add_u32 v{t1}, {64*j}, v{L}\nv_mul_u32_u24 v{t0}, {-(-65536//cpr)}, v{t1}\nv_lshrrev_b32 v{t0}, 16, v{t0}")
                    A(f"v_mul_u32_u24 v{v}, {cpr}, v{t0}\nv_sub_u32 v{t1}, v{t1}, v{v}")
                    sh, bits = {256: (0, 3), 128: (1, 2), 192: (2, 1)}[o.RB]
                    A(f"v_bfe_u32 v{v}, v{t0}, {sh}, {bits}\nv_lshlrev_b32 v{v}, 1, v{v}\nv_xor_b32 v{t1}, v{t1}, v{v}")
                    A(f"s_lshl_b32 s{st}, s{sw}, 4\nv_add_u32 v{t0}, s{st}, v{t0}\nv_mul_u32_u24 v{t0}, {o.pitch}, v{t0}\nv_lshl_add_u32 v{v}, v{t1}, 4, v{t0}")
    def setup_comp(s):
        A, L, t0, t1, st = s.A, s.lane, s.t0, s.t1, s.st
        for o in s.ops:
            if o.kind == "fr":
                if o.wsel is None: A(f"s_mov_b32 s{st}, {o.lo}")
                else: A(f"s_lshl_b32 s{st}, s{o.wsel}, 11\ns_add_u32 s{st}, s{st}, {o.lo}")
                A(f"v_lshl_add_u32 v{o.va}, v{L}, 4, s{st}")
            else:
                sh, bits = {256: (0, 3), 128: (1, 2), 192: (2, 1)}[o.RB]
                lin(A, t0, L, [(2, 4, o.RB), (0, 2, 8)], t1, o.lo)
                for i, t in enumerate(o.wt):
                    A(f"s_add_u32 s{st}, s{o.wsel}, {t}\nv_bfe_u32 v{t1}, v{L}, {2+sh}, {bits}\nv_xor_b32 v{t1}, s{st}, v{t1}")
                    A(f"v_lshl_add_u32 v{o.va+i}, v{t1}, 5, v{t0}")
    def dma(s, buf):
        out = []
        for o in s.ops:
            for j in range(o.nd):
                pre = f"s_mul_i32 s{s.st}, s{s.sw}, {o.nd*1024}\n" if j == 0 else ""
                post = f"\ns_add_u32 s{o.soff}, s{o.soff}, {o.adv}" if j == o.nd-1 else ""
                out.append(f"{pre}s_add_u32 m0, s{s.st}, {o.lo+buf*s.SB+j*1024}\ns_nop 0\nbuffer_load_dwordx4 v{o.vo+j}, s[{o.srd}:{o.srd+3}], s{o.soff} offen lds {o.flags}{post}")
        return out
    def frag(s, o, i, ks):
        k = sum(len(p.wt) for p in s.ops[:s.ops.index(o)]) + i
        return s.fb + 4*(k + s.nfr*ks)
    def reads(s, ks):
        out = []
        for o in s.ops:
            for i, t in enumerate(o.wt):
                f = s.frag(o, i, ks)
                if o.kind == "fr": out.append(f"ds_read_b128 {R('v',f)}, v{o.va} offset:{(2*t+ks)*1024}")
                else:
                    for q in range(2): out.append(f"ds_read_b64_tr_b16 {R('v',f+2*q,2)}, v{o.va+i} offset:{(32*ks+16*q)*o.RB}")
        return out
    def adv(s, b):
        d = s.SB if b < s.NS-1 else -(s.NS-1)*s.SB
        return [f"v_add_u32 v{o.va+i}, {d & 0xffffffff}, v{o.va+i}" for o in s.ops for i in range(1 if o.kind == 'fr' else len(o.wt))]
    def mix(s, mf, other):
        A = s.A; n = len(mf); k = 0
        for i, m in enumerate(mf):
            A(m)
            while k < len(other) and k*n < (i+1)*len(other): A(other[k]); k += 1
    def run(s, nst, mfmas, mode, scnt):
        A, NS = s.A, s.NS
        ld, cp = mode != "comp", mode != "load"
        if ld:
            for b in range(NS):
                for l in s.dma(b): A(l)
            A(f"s_waitcnt vmcnt({(NS-1)*s.ndma})")
        A("s_barrier")
        if cp:
            for l in s.reads(0): A(l)
        def stage(b, issue, infl, last=False):
            if cp:
                A("s_waitcnt lgkmcnt(0)"); s.mix(mfmas(0), s.reads(1) + s.adv(b)); A("s_waitcnt lgkmcnt(0)")
            if not last:
                if ld: A(f"s_waitcnt vmcnt({infl*s.ndma})")
                A("s_barrier")
            oth = (s.reads(0) if cp and not last else []) + (s.dma(b) if ld and issue else [])
            if cp: s.mix(mfmas(1), oth)
            else:
                for l in oth: A(l)
        nmain = nst - NS; nit = nmain // NS
        if nit:
            lb = A.lab("GL")
            A(f"s_mov_b32 s{scnt}, {nit}\n{lb}:")
            for b in range(NS): stage(b, True, NS-2)
            A(f"s_sub_u32 s{scnt}, s{scnt}, 1\ns_cmp_lg_u32 s{scnt}, 0\ns_cbranch_scc1 {lb}")
        for kt in range(nit*NS, nst):
            stage(kt % NS, kt < nmain, min(NS-2, nst-kt-2), kt == nst-1)
        if cp and nst % NS:
            for o in s.ops:
                for i in range(1 if o.kind == 'fr' else len(o.wt)):
                    A(f"v_subrev_u32 v{o.va+i}, {(nst % NS)*s.SB}, v{o.va+i}")
```

```python
from asmlib import *
from gemm import *
M16 = "v_mfma_f32_16x16x16_bf16"
def pro(A):
    A("""v_lshrrev_b32 v1, 6, v0
    v_and_b32 v0, 63, v0
    s_load_dwordx4 s[52:55], s[0:1], 104
    v_readfirstlane_b32 s21, v1
    s_waitcnt lgkmcnt(0)""")
    A.srd(8, 54, WSZ); A.srd(16, 52, 256)
def insrd(A, r, koff, size):
    A(f"s_load_dwordx2 s[{r}:{r+1}], s[0:1], {koff}\ns_mov_b32 s{r+2}, {size}\ns_mov_b32 s{r+3}, 0x00020000")
def rsum(A, v, t):
    for k in (8, 4, 2, 1):
        A(f"s_nop 1\nv_add_f32_dpp v{v}, v{v}, v{v} row_ror:{k} row_mask:0xf bank_mask:0xf")
def ln(A, second, sf="", lf=""):
    A(f"""s_lshl_b32 s44, s20, 4
    s_lshl_b32 s45, s21, 2
    s_add_u32 s44, s44, s45
    v_lshrrev_b32 v1, 4, v0
    v_add_u32 v2, s44, v1
    v_mul_u32_u24 v2, 1152, v2
    v_and_b32 v3, 15, v0
    v_lshl_add_u32 v2, v3, 3, v2""")
    if second: A(f"s_mov_b32 s44, {HH}\ns_mov_b32 s45, {HN}"); src = "s[8:11], s44"
    else:
        insrd(A, 12, 0, 2359296); src = "s[12:15], 0"
        lin(A, 3, 0, [(3, 1, 1024), (2, 1, 8), (0, 2, 256), (4, 2, 16)], 4)
        A(f"s_mul_i32 s44, s20, 18432\ns_lshl_b32 s45, s21, 6\ns_add_u32 s45, s45, s44\ns_add_u32 s45, s45, {XN}\ns_waitcnt lgkmcnt(0)")
    for i in range(9): A(f"buffer_load_dwordx2 v[{10+2*i}:{11+2*i}], v2, {src} offen offset:{128*i} {lf}")
    A(f"s_mov_b32 s46, {f2u(1/576)}\ns_mov_b32 s47, {f2u(1e-5)}")
    for p in range(2 if second else 1):
        for k in range(18):
            if p == 0 and k % 2 == 0: A(f"s_waitcnt vmcnt({8-k//2})")
            A(f"v_lshlrev_b32 v{30+2*k}, 16, v{10+k}\nv_and_b32 v{31+2*k}, 0xffff0000, v{10+k}")
            if k: A(f"v_pk_add_f32 v[4:5], v[{'4:5' if k > 1 else '30:31'}], v[{30+2*k}:{31+2*k}]")
        A("v_add_f32 v4, v4, v5"); rsum(A, 4, 5)
        A("v_mul_f32 v4, s46, v4\nv_mov_b32 v6, 0\nv_mov_b32 v7, 0\nv_mov_b32 v5, v4")
        for k in range(18):
            r = f"v[{30+2*k}:{31+2*k}]"
            A(f"v_pk_add_f32 {r}, {r}, v[4:5] neg_lo:[0,1] neg_hi:[0,1]\nv_pk_fma_f32 v[6:7], {r}, {r}, v[6:7]")
        A("v_add_f32 v6, v6, v7"); rsum(A, 6, 7)
        A("v_mov_b32 v7, s47\nv_fma_f32 v6, v6, s46, v7\nv_rsq_f32 v6, v6\ns_nop 0\nv_mov_b32 v7, v6")
        for k in range(18):
            r = f"v[{30+2*k}:{31+2*k}]"
            A(f"v_pk_mul_f32 {r}, {r}, v[6:7]\nv_cvt_pk_bf16_f32 v{10+k}, v{30+2*k}, v{31+2*k}")
    for i in range(9):
        if second: A(f"buffer_store_dwordx2 v[{10+2*i}:{11+2*i}], v2, s[8:11], s45 offen offset:{128*i} {sf}")
        else:
            A(f"buffer_store_dwordx2 v[{10+2*i}:{11+2*i}], v3, s[8:11], s45 offen offset:{2048*(i&1)} {sf}")
            if i & 1: A("s_add_u32 s45, s45, 4096")
class StA:
    def __init__(s, A, lf=""):
        s.A = A
        s.x = Op('fr', 8, 40, 18432, 8, list(range(8)), None, lf)
        s.w = [Op('tr', r, 41+i, 8192, 8, [0, 4], 21) for i, r in enumerate((12, 24, 28))]
        s.g = Gemm(A, [s.x]+s.w, 2, 2, 0, 21, 44)
    def setup(s):
        for i, r in enumerate((12, 24, 28)): insrd(s.A, r, 16+8*i, 4718592)
        s.g.setup_load(); s.g.setup_comp(); s.A("v_lshlrev_b32 v1, 4, v0\ns_waitcnt lgkmcnt(0)")
    def item(s, sf=""):
        A, g = s.A, s.g
        A(f"s_lshr_b32 s22, s20, 5\ns_and_b32 s23, s20, 31\ns_mul_i32 s40, s22, {8*18432}\ns_add_u32 s40, s40, {XN}\ns_lshl_b32 s41, s23, 8\ns_mov_b32 s42, s41\ns_mov_b32 s43, s41")
        for i in range(192): A(f"v_accvgpr_write_b32 a{i}, 0")
        acc = lambda op, t, j: ((op*8+t)*2+j)*4
        def mf(ks):
            o = []
            for op in range(3):
                for j in range(2):
                    for t in range(8):
                        a, b = R('v', g.frag(s.w[op], j, ks)), R('v', g.frag(s.x, t, ks))
                        if op == 2: a, b = b, a
                        c = R('a', acc(op, t, j)); o.append(f"{M32} {c}, {a}, {b}, {c}")
            return o
        g.run(9, mf, "both", 46)
        A(f"s_lshl_b32 s22, s22, 20\ns_lshl_b32 s23, s23, 13\ns_add_u32 s22, s22, s23\ns_lshl_b32 s23, s21, 11\ns_add_u32 s22, s22, s23\ns_nop 7")
        n = 0
        for op, base in ((1, KF), (2, VF), (0, QF)):
            for sg in range(4):
                A(f"s_add_u32 s44, s22, {base + sg*262144}")
                for u in range(2):
                    p = (acc(op, 2*sg+u, 0), acc(op, 2*sg+u, 1)) if op < 2 else (acc(op, 2*sg, u), acc(op, 2*sg+1, u))
                    t = g.fb + 12*(n % 8); n += 1
                    for i in range(8): A(f"v_accvgpr_read_b32 v{t+i}, a{p[i>>2]+(i&3)}")
                    for i in range(4): A(f"v_cvt_pk_bf16_f32 v{t+8+i}, v{t+2*i}, v{t+2*i+1}")
                    A(f"buffer_store_dwordx4 {R('v',t+8)}, v1, s[8:11], s44 offen offset:{u*1024} {sf}")
def xred(A, op, a, b):
    for pl in ("v_permlane16_swap_b32", "v_permlane32_swap_b32"):
        for x, y in zip(a, b): A(f"v_mov_b32 v{y}, v{x}")
        A("s_nop 1")
        for x, y in zip(a, b): A(f"{pl} v{x}, v{y}")
        for x, y in zip(a, b): A(f"{op} v{x}, v{x}, v{y}")
def stC(A, lf="", mf="", sf=""):
    A(f"""v_lshlrev_b32 v1, 4, v0
    s_lshl_b32 s44, s22, 17
    s_lshl_b32 s45, s23, 12
    s_add_u32 s44, s44, s45
    s_lshl_b32 s45, s44, 1""")
    def ld(reg, n, base, sr, fl):
        for i in range(n):
            if i % 4 == 0: A(f"s_add_u32 s46, s{sr}, {base + i*1024}")
            A.m(f"buffer_load_dwordx4 {R('v', reg+4*i)}, v1, s[8:11], s46 offen offset:{(i%4)*1024} {fl}", reg)
    A.vm = []
    ld(8, 8, QF, 45, lf); ld(40, 8, KF, 45, lf); ld(72, 4, KM, 44, mf); ld(88, 8, VF, 45, lf); ld(120, 4, VM, 44, mf)
    A("v_and_b32 v2, 15, v0\nv_lshrrev_b32 v3, 4, v0\nv_lshlrev_b32 v3, 2, v3\nv_sub_u32 v2, v2, v3")
    for r in range(4): A(f"v_cmp_le_i32_e64 s[{60+2*r}:{61+2*r}], {r}, v2")
    A(f"v_mov_b32 v3, {f2u(-1e30)}\ns_mov_b32 s47, {f2u(128**-0.5*1.4426950408889634)}")
    S = {("m",0):136, ("m",1):140, (0,0):144, (0,1):148, (1,1):152}
    for tags, keys in (((40,), [(0,0),(0,1),(1,1)]), ((72,), [("m",0),("m",1)])):
        A.wm(*tags)
        for w in range(4):
            for k, q in keys:
                a = 72+4*w if k == "m" else 40+4*(2*w+k); c = R('v', S[k,q])
                A(f"{M32} {c}, {R('v',a)}, {R('v',8+4*(2*w+q))}, {c if w else 0}")
    A.nop(8)
    for r in range(4): A(f"v_cndmask_b32_e64 v{144+r}, v3, v{144+r}, s[{60+2*r}:{61+2*r}]\nv_cndmask_b32_e64 v{152+r}, v3, v{152+r}, s[{60+2*r}:{61+2*r}]")
    T = {0: [136+i for i in range(4)]+[144+i for i in range(4)], 1: [140+i for i in range(4)]+[148+i for i in range(8)]}
    for q in (0, 1):
        t = T[q]; A(f"v_max_f32 v{4+q}, v{t[0]}, v{t[1]}")
        for i in range(2, len(t), 2): A(f"v_max3_f32 v{4+q}, v{t[i]}, v{t[i+1]}, v{4+q}")
    xred(A, "v_max_f32", [4, 5], [6, 7])
    A("v_mul_f32 v4, s47, v4\nv_mul_f32 v5, s47, v5")
    for q in (0, 1):
        for x in T[q]: A(f"v_fma_f32 v{x}, v{x}, s47, -v{4+q}")
        for x in T[q]: A(f"v_exp_f32 v{x}, v{x}")
    for q in (0, 1):
        t = T[q]; A(f"v_add_f32 v{4+q}, v{t[0]}, v{t[1]}\nv_add_f32 v6, v{t[2]}, v{t[3]}\nv_add_f32 v{4+q}, v{4+q}, v6\nv_mul_f32 v{4+q}, 0.5, v{4+q}")
        for x in t[4:]: A(f"v_add_f32 v{4+q}, v{4+q}, v{x}")
    xred(A, "v_add_f32", [4, 5], [6, 7])
    A("v_rcp_f32 v4, v4\nv_rcp_f32 v5, v5\nv_mov_b32 v162, 0\nv_mov_b32 v163, 0")
    for q in (0, 1):
        t = T[q]
        for x in t: A(f"v_mul_f32 v{x}, v{4+q}, v{x}")
        d = [156+2*q, 157+2*q] + [160+4*q+i for i in range(4)]
        for i in range(len(t)//2): A(f"v_cvt_pk_bf16_f32 v{d[i]}, v{t[2*i]}, v{t[2*i+1]}")
    A("s_waitcnt vmcnt(0)\ns_nop 0")
    for et in range(8):
        for q in (0, 1): A(f"{M16} {R('v',8+4*(2*et+q))}, {R('v',120+4*(et&3)+2*(et>>2),2)}, {R('v',156+2*q,2)}, 0")
    for et in range(8):
        for q in (0, 1): c = R('v',8+4*(2*et+q)); A(f"{M32} {c}, {R('v',88+4*(2*(et&3)+(et>>2)))}, {R('v',160+4*q)}, {c}")
    A(f"s_lshl_b32 s44, s22, 18\ns_lshl_b32 s45, s23, 12\ns_add_u32 s44, s44, s45\ns_add_u32 s44, s44, {OF}\ns_add_u32 s45, s44, 131072\ns_nop 3")
    for p in range(4):
        for q in (0, 1):
            t = 72+4*(2*p+q)
            for i in range(4): x = 8+4*(2*(2*p+(i>>1))+q)+2*(i&1); A(f"v_cvt_pk_bf16_f32 v{t+i}, v{x}, v{x+1}")
            A(f"buffer_store_dwordx4 {R('v',t)}, v1, s[8:11], s{44+q} offen offset:{p*1024} {sf}")
def stDF(A, F, NS=6, lf="", sf=""):
    if F:
        d = Op('fr', 8, 41, 147456, 6, [0,1,2], 48, lf); t = Op('tr', 12, 40, 4096, 4, [0,1], 47)
        insrd(A, 12, 80, 18874368); insrd(A, 24, 88, 4096); insrd(A, 28, 96, 2359296)
        A(f"s_lshl_b32 s40, s22, 7\ns_mul_i32 s41, s23, {6*147456}\ns_add_u32 s41, s41, {UU}")
    else:
        d = Op('tr', 12, 41, 1152, 6, [0,1,2], 48); t = Op('fr', 8, 40, 131072, 4, [0,1], 47, lf)
        insrd(A, 12, 40, 4718592); insrd(A, 24, 0, 2359296)
        A(f"s_lshl_b32 s40, s22, 19\ns_add_u32 s40, s40, {OF}\ns_mul_i32 s41, s23, 192")
    g = Gemm(A, [t, d], NS, 64, 0, 21, 44)
    A(f"""s_and_b32 s47, s21, 1
    s_lshl_b32 s47, s47, 1
    s_lshr_b32 s48, s21, 1
    s_mul_i32 s48, s48, 3
    s_lshl_b32 s44, s22, 2
    s_add_u32 s44, s44, s47
    s_lshl_b32 s44, s44, 4
    v_and_b32 v2, 15, v0
    v_add_u32 v2, s44, v2
    v_lshlrev_b32 v4, 1, v2
    v_mul_u32_u24 v2, 1152, v2
    s_mul_i32 s44, s23, 192
    s_lshl_b32 s45, s48, 5
    s_add_u32 s44, s44, s45
    v_lshrrev_b32 v3, 4, v0
    v_lshl_add_u32 v2, v3, 3, v2
    v_add_u32 v2, s44, v2
    v_add_u32 v3, 18432, v2
    s_mov_b32 s49, {HH}""")
    g.setup_load(); g.setup_comp(); A("s_waitcnt lgkmcnt(0)")
    for i in range(3):
        for j in range(2): A(f"buffer_load_dwordx2 {R('v',8+2*(2*i+j),2)}, v{2+j}, {'s[8:11], s49' if F else 's[24:27], 0'} offen offset:{32*i} {lf if F else ''}")
    if F: A("buffer_load_ushort v5, v4, s[24:27], 0 offen\nbuffer_load_ushort v6, v4, s[24:27], 0 offen offset:32")
    for i in range(24): A(f"v_mov_b32 v{24+i}, 0")
    mf = lambda ks: [f"{M32} {R('v',24+4*(2*i+j))}, {R('v',g.frag(d,i,ks))}, {R('v',g.frag(t,j,ks))}, {R('v',24+4*(2*i+j))}" for i in range(3) for j in range(2)]
    g.run(72 if F else 64, mf, "both", 46)
    if F: A("v_lshlrev_b32 v5, 16, v5\nv_lshlrev_b32 v6, 16, v6")
    A("s_nop 7")
    for i in range(3):
        for j in range(2):
            c = 24+4*(2*i+j); r = 8+2*(2*i+j)
            for k in range(4):
                if F: A(f"v_add_f32 v{c+k}, v{5+j}, v{c+k}")
                A((f"v_and_b32 v20, 0xffff0000, v{r+(k>>1)}" if k & 1 else f"v_lshlrev_b32 v20, 16, v{r+(k>>1)}") + f"\nv_add_f32 v{c+k}, v20, v{c+k}")
            A(f"v_cvt_pk_bf16_f32 v{r}, v{c}, v{c+1}\nv_cvt_pk_bf16_f32 v{r+1}, v{c+2}, v{c+3}")
            A(f"buffer_store_dwordx2 {R('v',r,2)}, v{2+j}, {'s[28:31], 0' if F else 's[8:11], s49'} offen offset:{32*i} {sf}")
    return g.SB*NS
def stE(A, NS=5, lf="", sf=""):
    h = Op('tr', 8, 40, 1152, 6, [0,1,2], 48, lf); w = Op('tr', 12, 41, 9216, 8, [0,1,2,3], 47)
    insrd(A, 12, 64, 18874368); insrd(A, 24, 72, 9216)
    g = Gemm(A, [h, w], NS, 72, 0, 21, 44)
    A(f"""s_mul_i32 s40, s23, 192
    s_add_u32 s40, s40, {HN}
    s_lshl_b32 s41, s22, 8
    s_and_b32 s47, s21, 1
    s_lshl_b32 s47, s47, 2
    s_lshr_b32 s48, s21, 1
    s_mul_i32 s48, s48, 3
    s_lshl_b32 s44, s47, 5
    s_add_u32 s44, s44, s41
    v_lshrrev_b32 v2, 4, v0
    v_lshl_add_u32 v2, v2, 3, s44
    v_lshlrev_b32 v1, 4, v0""")
    g.setup_load(); g.setup_comp(); A("s_waitcnt lgkmcnt(0)")
    for i in range(4): A(f"buffer_load_dwordx2 {R('v',8+2*i,2)}, v2, s[24:27], 0 offen offset:{32*i}")
    for i in range(48): A(f"v_mov_b32 v{24+i}, 0")
    mf = lambda ks: [f"{M32} {R('v',24+4*(3*i+j))}, {R('v',g.frag(w,i,ks))}, {R('v',g.frag(h,j,ks))}, {R('v',24+4*(3*i+j))}" for i in range(4) for j in range(3)]
    g.run(32, mf, "both", 46)
    c0 = -2*0.7978845608028654*1.4426950408889634
    A(f"""s_mul_i32 s44, s23, 6
    s_add_u32 s44, s44, s48
    s_mul_i32 s44, s44, 147456
    s_lshl_b32 s45, s22, 3
    s_add_u32 s45, s45, s47
    s_lshl_b32 s45, s45, 9
    s_add_u32 s44, s44, s45
    s_add_u32 s44, s44, {UU}
    s_mov_b32 s45, {f2u(c0*0.044715)}
    v_mov_b32 v3, {f2u(c0)}""")
    b = g.fb
    for i in range(8): A(f"v_lshlrev_b32 v{b+2*i}, 16, v{8+i}\nv_and_b32 v{b+2*i+1}, 0xffff0000, v{8+i}")
    for j in range(3):
        for p in range(2):
            u = [24+4*(3*(2*p+(k>>2))+j)+(k&3) for k in range(8)]; t = [16+k for k in range(8)]
            for k in range(8): A(f"v_add_f32 v{u[k]}, v{b+8*p+k}, v{u[k]}\nv_mul_f32 v{t[k]}, v{u[k]}, v{u[k]}\nv_fma_f32 v{t[k]}, v{t[k]}, s45, v3\nv_mul_f32 v{t[k]}, v{t[k]}, v{u[k]}")
            for op in ("v_exp_f32 v{t}, v{t}", "v_add_f32 v{t}, 1.0, v{t}", "v_rcp_f32 v{t}, v{t}", "v_mul_f32 v{u}, v{t}, v{u}"):
                for k in range(8): A(op.format(t=t[k], u=u[k]))
            o = b+16+4*(2*j+p)
            for k in range(4): A(f"v_cvt_pk_bf16_f32 v{o+k}, v{u[2*k]}, v{u[2*k+1]}")
            A(f"buffer_store_dwordx4 {R('v',o)}, v1, s[8:11], s44 offen offset:{p*1024} {sf}")
        A("s_add_u32 s44, s44, 147456")
    return g.SB*NS
```

```python
import sys
from asmlib import *
import st, chain
P = "sequential_preLN__memory_aug_recurrent_mem_tr__mixer_token_mlp__prompt"
chain.DA, chain.DB, chain.DN, chain.DS, chain.KVF = 4, 3, 14, 3, 'sc1'
def div6(A):
    A("s_lshr_b32 s44, s2, 3\ns_mul_i32 s45, s44, 43\ns_lshr_b32 s45, s45, 8\ns_mul_i32 s46, s45, 6\ns_sub_u32 s23, s44, s46\ns_lshl_b32 s45, s45, 3\ns_and_b32 s44, s2, 7\ns_add_u32 s22, s44, s45")
def build_all():
    A = Asm(); K = []
    def begin(n, grid):
        A(f".globl {n}\n.p2align 8\n.type {n},@function\n{n}:\ns_cmp_ge_u32 s2, {grid}\ns_cbranch_scc1 {n}_E\ns_mov_b32 s20, s2")
    def end(n, grid, lds, vg, acc):
        A(f"s_waitcnt vmcnt(0)\n{n}_E:\ns_endpgm"); K.append((n, grid, lds, vg, acc))
    begin("ln0_kernel", 128); st.pro(A); st.ln(A, False); end("ln0_kernel", 128, 0, 72, 72)
    begin("qkv_kernel", 512); st.pro(A); a = st.StA(A); a.setup(); a.item(); end("qkv_kernel", 512, 2*a.g.SB, 512, 256)
    n = P + "_kernel"
    begin(n, 256); A(f"s_and_b32 s3, s2, 7\ns_cmp_lg_u32 s3, 0\ns_cbranch_scc1 {n}_E"); chain.gen_chain(A, None); end(n, 256, 163840, 512, 256)
    begin("att_kernel", 512); st.pro(A); A("s_lshr_b32 s22, s2, 3\ns_and_b32 s23, s2, 7\ns_lshl_b32 s23, s23, 2\ns_add_u32 s23, s23, s21"); st.stC(A); end("att_kernel", 512, 0, 168, 168)
    begin("op_kernel", 192); st.pro(A); div6(A); l = st.stDF(A, False); end("op_kernel", 192, l, 128, 128)
    begin("ln2_kernel", 128); st.pro(A); st.ln(A, True); end("ln2_kernel", 128, 0, 72, 72)
    begin("m1_kernel", 240); st.pro(A); div6(A); A("s_cmp_ge_u32 s22, 36\ns_cbranch_scc1 m1_kernel_E"); l = st.stE(A); end("m1_kernel", 240, l, 160, 160)
    begin("m2_kernel", 192); st.pro(A); div6(A); l = st.stDF(A, True); end("m2_kernel", 192, l, 128, 128)
    return fin(A, K)
def fin(A, K):
    hdr = "".join(l for l in open(f"cdna_kernels/{P}.s.ref").readlines()[:16])
    hdr += "".join(f"; @launch kernel={n} grid=({g},1,1) block=(256,1,1) lds={l}\n" for n, g, l, _, _ in K)
    return hdr + '.amdgcn_target "amdgcn-amd-amdhsa--gfx950"\n.text\n' + A.text() + '.section .rodata,"a"\n' + "".join(".p2align 6\n" + kdesc(n, v, a) for n, _, _, v, a in K)
if __name__ == "__main__":
    open(sys.argv[1] if len(sys.argv) > 1 else f"cdna_kernels/{P}.s", "w").write(build_all())
```

```python
import numpy as np
class Asm:
    def __init__(s):
        s.L = []; s.ds = []; s.vm = []; s.uid = 0
    def __call__(s, txt):
        for l in txt.strip("\n").split("\n"):
            s.L.append("  " + l.strip() if not l.strip().endswith(":") else l.strip())
    def d(s, txt, tag=None):
        s(txt); s.ds.append(tag)
    def m(s, txt, tag=None):
        s(txt); s.vm.append(tag)
    def _n(s, q, tags):
        last = max(i for i, t in enumerate(q) if t in tags)
        return len(q) - 1 - last
    def wd(s, *tags):
        n = s._n(s.ds, tags); s(f"s_waitcnt lgkmcnt({min(n,15)})")
    def wm(s, *tags):
        n = s._n(s.vm, tags); assert n < 64; s(f"s_waitcnt vmcnt({n})")
    def nop(s, n):
        while n > 0:
            k = min(n, 16); s(f"s_nop {k-1}"); n -= k
    def lab(s, p):
        s.uid += 1; return f"{p}_{s.uid}"
    def srd(s, r, b, size):
        s(f"s_mov_b32 s{r}, s{b}\ns_mov_b32 s{r+1}, s{b+1}\ns_mov_b32 s{r+2}, {size}\ns_mov_b32 s{r+3}, 0x00020000")
    def text(s): return "\n".join(s.L) + "\n"
def f2u(x): return hex(int(np.float32(x).view(np.uint32)))
def R(k, a, n=4): return f"{k}[{a}:{a+n-1}]"
def kdesc(name, vgpr=512, acc=256, sgpr=102):
    return f""".amdhsa_kernel {name}
  .amdhsa_next_free_vgpr {vgpr}
  .amdhsa_next_free_sgpr {sgpr}
  .amdhsa_accum_offset {acc}
  .amdhsa_group_segment_fixed_size 0
  .amdhsa_kernarg_size 120
  .amdhsa_user_sgpr_count 2
  .amdhsa_user_sgpr_kernarg_segment_ptr 1
  .amdhsa_system_sgpr_workgroup_id_x 1
.end_amdhsa_kernel
"""
XN=0; QF=0x400000; KF=0x1400000; VF=0x2400000; KM=0x3400000; VM=0x3C00000; HA=0x4400000; HB=0x4480000
TS=0x4490000; OF=0x4800000; HH=0x5800000; HN=0x5C00000; UU=0x6000000; WSZ=0x10000000

import os
DBG = bool(os.environ.get("DBG"))
FL = 0x44A0000
def stamp(A, idx, cond, v, t=90):
    if not DBG: return
    l = A.lab("ST")
    A(f"s_cmp_lg_u32 {cond}, 0\ns_cbranch_scc1 {l}\ns_memrealtime s[{t}:{t+1}]\ns_waitcnt lgkmcnt(0)\nv_mov_b32 v{v}, s{t}\nbuffer_store_dword v{v}, off, s[16:19], 0 offset:{4*idx}\n{l}:")
```

```python
from asmlib import *
PFD = 1
DS = 3
DA, DB, DN, MODE, KVF = 0, 0, 8, 0, ''
LM, LS, LO = 147456, 156672, 161792
def wreg(name, t):
    if name == "q0": return R("a", 8*t, 8)
    if name == "q1": return R("a", 72+8*t, 8)
    if name == "k0": return R("a", 144+8*t, 8)
    if name == "v0": return R("a", 216+8*t, 8) if t < 5 else R("v", 224+8*(t-5), 8)
def wsub(name, t, q):
    base = {"q0": ("a", 8*t), "q1": ("a", 72+8*t), "k0": ("a", 144+8*t),
            "v0": ("a", 216+8*t) if t < 5 else ("v", 224+8*(t-5)),
            "k1": ("v", 152+8*t), "v1": ("v", 80+8*t), "o0": ("v", 8+8*t), "o1": ("v", 152+8*t)}[name]
    return R(base[0], base[1]+2*q, 2)
def gen_chain(A, prof=False, flags=False):
    A(f"""
    s_lshr_b32 s20, s2, 3
    v_lshrrev_b32 v1, 6, v0
    v_and_b32 v0, 63, v0
    s_load_dwordx4 s[40:43], s[0:1], 16
    s_load_dwordx4 s[44:47], s[0:1], 32
    s_load_dwordx2 s[48:49], s[0:1], 8
    s_load_dwordx4 s[52:55], s[0:1], 104
    v_readfirstlane_b32 s21, v1
    s_getreg_b32 s24, hwreg(HW_REG_XCC_ID, 0, 4)
    s_waitcnt lgkmcnt(0)""")
    A.srd(8, 54, WSZ); A.srd(16, 52, 256)
    stamp(A, 18, "s2", 1)
    A(f"""
    v_lshrrev_b32 v1, 3, v0
    v_lshlrev_b32 v1, 13, v1
    v_bfe_u32 v2, v0, 1, 2
    v_bfe_u32 v3, v0, 4, 1
    v_xor_b32 v2, v2, v3
    v_lshlrev_b32 v2, 5, v2
    v_and_b32 v3, 1, v0
    v_lshlrev_b32 v3, 4, v3
    v_add3_u32 v1, v1, v2, v3
    v_xor_b32 v2, 64, v1
    v_lshlrev_b32 v3, 4, v0
    s_lshl_b32 s25, s21, 10
    s_lshl_b32 s26, s21, 16
    s_lshl_b32 s27, s20, 8
    s_add_u32 s26, s26, s27
    s_mul_i32 s27, s20, 147456
    s_add_u32 s27, s27, s25""")
    chunks = [("k1",42,1),("v1",44,1),("k0",42,0),("v0",44,0),("q0",40,0),("q1",40,1),("o0",46,0),("o1",46,1)]
    def issue(c):
        nm, b, j = chunks[c]
        A.srd(12, b, 4718592)
        for ii in range(18):
            A(f"s_add_u32 m0, s25, {(c&1)*73728 + ii*4096}")
            if nm[0] == "o":
                A(f"s_add_u32 s28, s27, {j*73728 + ii*4096}")
                A.m(f"buffer_load_dwordx4 v3, s[12:15], s28 offen lds", f"c{c}")
            else:
                A(f"s_add_u32 s28, s26, {ii*4*65536 + j*128}")
                A.m(f"buffer_load_dwordx4 v{1+(ii&1)}, s[12:15], s28 offen lds", f"c{c}")
    issue(0); issue(1)
    A(f"""
    v_mov_b32 v8, 0
    v_mov_b32 v9, 0
    v_mov_b32 v10, 0
    v_mov_b32 v11, 0
    v_lshrrev_b32 v4, 3, v0
    v_lshlrev_b32 v4, 12, v4
    v_and_b32 v5, 7, v0
    v_lshl_add_u32 v4, v5, 4, v4
    s_lshl_b32 s28, s20, 7
    s_add_u32 s28, s28, {HA}""")
    for i in range(9):
        A(f"s_add_u32 s29, s28, {i*32768}")
        A.m(f"buffer_store_dwordx4 v[8:11], v4, s[8:11], s29 offen sc1")
    A(f"s_mov_b32 s29, {HB}")
    for i in range(9):
        A.m(f"buffer_store_dwordx4 v[8:11], v3, s[8:11], s29 offen offset:{(i%4)*1024} sc1")
        if i % 4 == 3: A(f"s_add_u32 s29, s29, 4096")
    if FLAGS:
        A(f"s_and_b32 s29, s20, 7\ns_lshl_b32 s29, s29, 2\ns_add_u32 s29, s29, s21\ns_lshl_b32 s29, s29, 10\ns_add_u32 s29, s29, {FL}")
        for i in range(1): A.m(f"buffer_store_dwordx4 v[8:11], v3, s[8:11], s29 offen offset:{i*1024} sc1")
    A(f"""
    v_bfe_u32 v6, v0, 4, 1
    v_bfe_u32 v7, v0, 5, 1
    v_bfe_u32 v8, v0, 2, 2
    v_lshlrev_b32 v4, 5, v6
    v_lshl_add_u32 v4, v7, 3, v4
    v_add_u32 v4, v4, v8
    v_lshlrev_b32 v4, 7, v4
    v_lshrrev_b32 v9, 1, v8
    v_lshl_add_u32 v10, v6, 1, v9
    v_xor_b32 v10, s21, v10
    v_lshl_add_u32 v4, v10, 5, v4
    v_and_b32 v10, 3, v0
    v_lshl_add_u32 v4, v10, 3, v4
    v_lshlrev_b32 v5, 4, v7
    v_lshl_add_u32 v5, v6, 2, v5
    v_lshl_add_u32 v5, v9, 3, v5
    v_and_b32 v8, 1, v8
    v_add_u32 v5, v5, v8
    v_mul_u32_u24 v5, 1152, v5
    v_lshl_add_u32 v5, v10, 3, v5
    s_mul_i32 s28, s21, 288
    v_add_u32 v5, s28, v5""")
    for c in range(8):
        nm = chunks[c][0]
        if c == 0:
            A("s_waitcnt vmcnt(0)\ns_barrier")
            lb = A.lab("NOSIG")
            A(f"""s_cmp_lg_u32 s21, 0
            s_cbranch_scc1 {lb}
            s_lshl_b32 s28, 1, s24
            v_mov_b32 v6, s28
            v_mov_b32 v7, 0
            s_mov_b64 exec, 1
            buffer_atomic_or v6, v7, s[16:19], 0 offen offset:4 sc0
            s_waitcnt vmcnt(0)
            v_mov_b32 v6, 1
            buffer_atomic_add v6, v7, s[16:19], 0 offen
            s_waitcnt vmcnt(0)
            s_mov_b64 exec, -1
            {lb}:""")
        else:
            A.wm(f"c{c}"); A("s_barrier")
        if c == 7:
            A(f"s_mul_i32 s28, s21, 18432\nv_add_u32 v6, s28, v3")
            for t in range(18): A(f"ds_write_b128 v6, {R('v',152+4*t)} offset:{t*1024}")
            A("s_waitcnt lgkmcnt(0)")
        if nm[0] == "o":
            A(f"v_add_u32 v6, {(c&1)*73728}, v5")
            for q in range(4):
                A(f"ds_read_b64_tr_b16 {wsub(nm,8,q)}, v6 offset:{(32*(q>>1)+2*(q&1))*1152+32*8}")
            A(f"""v_bfe_u32 v7, v0, 5, 1
            v_mul_u32_u24 v7, {8*1152}, v7
            v_sub_u32 v6, v6, v7
            v_bfe_u32 v7, v0, 3, 1
            v_mul_u32_u24 v7, {8*1152-32}, v7
            v_sub_u32 v6, v6, v7""")
            for T in range(8):
                for q in range(4):
                    A(f"ds_read_b64_tr_b16 {wsub(nm,T,q)}, v6 offset:{(32*(T&1)+16*(q>>1)+2*(q&1))*1152+64*(T>>1)}")
        else:
            A(f"v_add_u32 v6, {(c&1)*73728}, v4\nv_add_u32 v7, {(c&1)*73728+32768}, v4")
            for t in range(9):
                for q in range(4):
                    o = (64*t+16*(q>>1)+4*(q&1))*128
                    A(f"ds_read_b64_tr_b16 {wsub(nm,t,q)}, v{6 if t<4 else 7} offset:{o if t<4 else o-32768}")
        A("s_waitcnt lgkmcnt(0)")
        if c < 6:
            A("s_barrier"); issue(c+2)
    A(f"s_barrier\ns_mul_i32 s28, s21, 18432\ns_add_u32 s28, s28, 73728\nv_add_u32 v6, s28, v3")
    for t in range(18): A(f"ds_write_b128 v6, {R('v',80+4*t)} offset:{t*1024}")
    A("s_waitcnt lgkmcnt(0)")
    for i in range(72): A(f"v_mov_b32 v{80+i}, v{8+i}")
    A.srd(12, 48, 9216)
    A(f"s_lshl_b32 s28, s21, 6\nv_add_u32 v6, s28, v0")
    for i in range(3):
        A(f"v_add_u32 v7, {i*256}, v6\nv_min_u32 v7, 575, v7\nv_lshlrev_b32 v8, 1, v7\nv_lshlrev_b32 v7, 4, v7\nv_add_u32 v7, {LM}, v7")
        for r in range(8):
            A(f"buffer_load_ushort v{20+r}, v8, s[12:15], 0 offen offset:{(r%3)*1152}")
            if r % 3 == 2: A("v_add_u32 v8, 3456, v8")
        A("s_waitcnt vmcnt(0)")
        for r in range(4): A(f"v_lshl_or_b32 v{12+r}, v{21+2*r}, 16, v{20+2*r}")
        A("ds_write_b128 v7, v[12:15]\ns_waitcnt lgkmcnt(0)")
    A(f"""
    v_mov_b32 v14, v0
    v_and_b32 v15, 15, v14
    v_lshrrev_b32 v16, 4, v14
    v_lshlrev_b32 v17, 4, v14
    v_add_u32 v0, {LS}, v17
    s_mul_i32 s28, s21, 18432
    v_add_u32 v1, s28, v17
    v_bfe_u32 v18, v14, 3, 1
    v_lshlrev_b32 v2, 2, v18
    v_bfe_u32 v18, v14, 2, 1
    v_add_u32 v2, v2, v18
    v_bfe_u32 v18, v14, 1, 1
    v_lshl_add_u32 v2, v18, 1, v2
    v_lshl_add_u32 v2, v16, 3, v2
    v_lshlrev_b32 v2, 4, v2
    v_and_b32 v18, 1, v14
    v_lshl_add_u32 v2, v18, 3, v2
    v_add_u32 v2, {LM}, v2
    s_mul_i32 s28, s21, 1280
    v_add_u32 v3, s28, v0
    v_and_b32 v4, 31, v14
    v_lshlrev_b32 v4, 3, v4
    v_add_u32 v4, {LS+1024}, v4
    v_add_u32 v5, s28, v4
    v_and_b32 v18, 1, v16
    v_lshrrev_b32 v19, 1, v16
    v_lshlrev_b32 v6, 4, v15
    v_lshl_add_u32 v6, v18, 3, v6
    v_lshl_add_u32 v6, v19, 7, v6
    s_lshl_b32 s28, s21, 8
    s_add_u32 s28, s28, {LO}
    v_add_u32 v6, s28, v6
    s_mul_i32 s29, s20, 3
    s_add_u32 s29, s29, s21
    s_lshl_b32 s30, s29, 7
    s_add_u32 s30, s30, {HB}
    s_sub_u32 s30, s30, s28
    s_lshl_b32 s31, s29, 12
    s_add_u32 s31, s31, {HA-LS}
    v_lshl_add_u32 v7, v18, 1, v19
    v_lshl_add_u32 v7, v7, 4, v15
    s_mul_i32 s28, s21, 144
    v_add_u32 v7, s28, v7
    s_add_u32 s28, s28, 128
    v_add_u32 v8, s28, v15
    v_lshrrev_b32 v20, 3, v7
    v_and_b32 v7, 7, v7
    v_lshlrev_b32 v7, 4, v7
    v_lshl_add_u32 v7, v20, 12, v7
    v_lshrrev_b32 v20, 3, v8
    v_and_b32 v8, 7, v8
    v_lshlrev_b32 v8, 4, v8
    v_lshl_add_u32 v8, v20, 12, v8
    v_lshl_add_u32 v8, v18, 3, v8
    v_lshl_add_u32 v8, v19, 2, v8
    s_lshl_b32 s32, s20, 7
    s_add_u32 s32, s32, {HA}
    s_add_u32 s33, s32, 32768
    s_mul_i32 s28, s21, 2304
    s_add_u32 s28, s28, {LM}
    v_add_u32 v9, s28, v17
    s_add_u32 s28, s28, 2048
    v_and_b32 v10, 31, v14
    v_lshl_add_u32 v10, v10, 3, s28
    s_mov_b32 s34, {HB-LM}
    s_mov_b32 s60, 0xff00ff00
    s_mov_b32 s61, 0xff00ff00
    s_mov_b32 s62, 0x00ff00ff
    s_mov_b32 s63, 0x00ff00ff
    s_mov_b32 s64, -1
    s_mov_b32 s65, 0
    v_mov_b32 v11, 0x4444
    v_mov_b32 v18, 0xeeee
    v_cndmask_b32 v11, v11, v18, s[60:61]
    v_and_b32 v18, 7, v15
    v_and_b32 v19, 1, v16
    v_lshlrev_b32 v19, 2, v19
    v_sub_u32 v18, v18, v19
    v_mov_b32 v12, 0
    v_mov_b32 v13, 0
    v_mov_b32 v20, 0x3f80
    v_mov_b32 v21, 0x3f800000
    v_cmp_eq_u32 vcc, 0, v18
    s_nop 1
    v_cndmask_b32 v12, v12, v20, vcc
    v_cmp_eq_u32 vcc, 1, v18
    s_nop 1
    v_cndmask_b32 v12, v12, v21, vcc
    v_cmp_eq_u32 vcc, 2, v18
    s_nop 1
    v_cndmask_b32 v13, v13, v20, vcc
    v_cmp_eq_u32 vcc, 3, v18
    s_nop 1
    v_cndmask_b32 v13, v13, v21, vcc
    v_and_b32 v18, 7, v15
    v_lshrrev_b32 v18, 1, v18
    v_cmp_eq_u32 s[66:67], 0, v18
    v_cmp_eq_u32 s[68:69], 1, v18
    v_cmp_eq_u32 s[70:71], 2, v18
    v_cmp_eq_u32 s[72:73], 3, v18
    s_mov_b32 s74, 0xaaaaaaaa
    s_mov_b32 s75, 0xaaaaaaaa
    s_lshl_b32 s35, s20, 13
    s_lshl_b32 s28, s21, 11
    s_add_u32 s36, s35, s28
    s_add_u32 s37, s36, {VF-LS}
    s_add_u32 s36, s36, {KF-LS}
    s_and_b32 s35, s20, 7
    s_lshl_b32 s35, s35, 2
    s_add_u32 s35, s35, s21
    s_lshl_b32 s35, s35, 13
    s_add_u32 s35, s35, {KF+PFD*262144-8*LS}
    s_mov_b32 m0, 163840
    s_lshl_b32 s38, s20, 12
    s_lshl_b32 s28, s21, 10
    s_add_u32 s38, s38, s28
    s_add_u32 s39, s38, {VM-LS}
    s_add_u32 s38, s38, {KM-LS}
    s_mov_b32 s76, {f2u(128**-0.5*1.4426950408889634)}
    s_mov_b32 s77, 0x3f803f80
    s_mov_b32 s22, 0
    s_mov_b32 s23, 1
    s_cmp_lt_u32 s20, 24
    s_cselect_b32 s78, 1, 0
    s_cmp_lt_u32 s21, 3
    s_cselect_b32 s78, s78, 0
    v_mov_b32 v20, 0
    s_mov_b32 s79, 0""")
    lw = A.lab("HS")
    A(f"""{lw}:
    buffer_load_dwordx2 v[18:19], v20, s[16:19], 0 offen sc1
    s_add_u32 s79, s79, 1
    s_cmp_gt_u32 s79, 0x100000
    s_cbranch_scc1 CH_END
    s_waitcnt vmcnt(0)
    v_readfirstlane_b32 s28, v18
    v_readfirstlane_b32 s29, v19
    s_cmp_lt_u32 s28, 32
    s_cbranch_scc1 {lw}
    s_bcnt1_i32_b32 s29, s29""")
    if FLAGS:
        A(f"s_lshl_b32 s81, s20, 7\ns_add_u32 s81, s81, s21\ns_add_u32 s81, s81, {FL}\ns_mov_b32 s80, 0"); stamp(A, 19, "s2", 18); rdy(A, 18); stamp(A, 20, "s2", 18)
    A(f"""s_cmp_eq_u32 s29, 1
    s_cbranch_scc0 CH_SLOW""")
    if prof is not None: A("s_memrealtime s[94:95]")
    loop(A, "F", "", prof)
    A("CH_SLOW:")
    loop(A, "S", "sc1", False)
    A("CH_END:")
    if FLAGS: A("s_waitcnt vmcnt(0)\nv_mov_b32 v14, s22\nv_add_u32 v14, 1, v14\nbuffer_store_byte v14, off, s[8:11], s81 sc1")
    stamp(A, 21, "s2", 14)

FLAGS = False
def rdy(A, v):
    l = A.lab("RDY")
    A(f"""s_mov_b32 s79, 0
    {l}:
    s_add_u32 s28, s22, 1
    s_cmp_lt_u32 s28, s80
    s_cbranch_scc1 {l}_ok
    v_mbcnt_lo_u32_b32 v{v}, -1, 0
    v_lshlrev_b32 v{v}, 2, v{v}
    buffer_load_dword v{v}, v{v}, s[16:19], 0 offen offset:8 sc1
    s_add_u32 s79, s79, 1
    s_cmp_gt_u32 s79, 0x100000
    s_cbranch_scc1 CH_END
    s_waitcnt vmcnt(0)
    v_and_b32 v{v}, 0x200, v{v}
    v_cmp_ne_u32 vcc, 0, v{v}
    s_nop 1
    s_and_b32 s28, vcc_lo, 0xffff
    s_ff0_i32_b32 s28, s28
    s_lshl_b32 s80, s28, 2
    s_cmp_eq_u32 s28, 16
    s_cselect_b32 s80, 0x3e8, s80
    s_branch {l}
    {l}_ok:""")
def loop(A, X, stf, prof):
    SM = "v_smfmac_f32_16x16x64_bf16"
    M32 = "v_mfma_f32_16x16x32_bf16"; M16 = "v_mfma_f32_16x16x16_bf16"
    DPP = "row_ror:8 row_mask:0xf bank_mask:0xf"
    def stamp_(i):
        if prof: A(f"s_memtime s[{80+2*i}:{81+2*i}]")
    def ldA(t, slot, tag):
        A.d(f"ds_read_b64_tr_b16 v[{slot}:{slot+1}], v2 offset:{t*1024}", tag)
        A.d(f"ds_read_b64_tr_b16 v[{slot+2}:{slot+3}], v2 offset:{t*1024+512}", tag)
    def ldW(t, b, tag):
        A.d(f"ds_read_b128 {R('v',22+8*b)}, v1 offset:{t*2048}", tag)
        A.d(f"ds_read_b128 {R('v',26+8*b)}, v1 offset:{t*2048+1024}", tag)
    def pre():
        for i in range(50, 74): A(f"v_mov_b32 v{i}, 0")
        ldW(0, 0, "k0"); ldW(1, 1, "k1")
    pre()
    A.m(f"buffer_load_dwordx4 v[14:17], v0, s[8:11], s36 offen", "kx")
    A.m(f"buffer_load_dwordx4 v[18:21], v0, s[8:11], s36 offen offset:1024", "kx")
    A(f"s_waitcnt lgkmcnt(0)\nSTEP{X}:\ns_barrier")
    stamp_(0)
    A.ds = []; A.vm = ["kx"]
    for t in range(3): ldA(t, 38+4*t, f"a{t}")
    for t in range(9):
        sl = R("v", 38+4*(t%3)); u = t-1
        A.wd(f"a{t}")
        A(f"{SM} v[50:53], {sl}, {wreg('q0',t)}, v11")
        if 1 <= t <= 7: ldW(t+1, u&1, f"k{t+1}")
        if t == 8: ldW(0, 1, "p0")
        A(f"{SM} v[54:57], {sl}, {wreg('q1',t)}, v11")
        if 1 <= t <= 6: ldA(t+2, 38+4*(u%3), f"a{t+2}")
        if t >= 7: ldA(t-7, 38+4*(u%3), f"p{t-7}")
        A(f"{SM} v[58:61], {sl}, {wreg('k0',t)}, v11")
        if t == 7: A("v_add_u32 v1, 73728, v1")
        if t == 3: A("s_waitcnt vmcnt(2)")
        if t >= 2: A.wd(f"k{t}")
        A(f"{SM} v[62:65], {sl}, {R('v',22+8*(t&1),8)}, v11")
        if 3 <= t <= 6: A(f"v_mov_b32 v{66+2*(t-3)}, 0\nv_mov_b32 v{67+2*(t-3)}, 0")
    ldW(1, 0, "p1")
    stamp_(1)
    def pair(t):
        sl = R("v", 38+4*(t&1))
        A.wd(f"p{t}")
        A(f"{SM} v[66:69], {sl}, {wreg('v0',t)}, v11")
        A(f"{SM} v[70:73], {sl}, {R('v',22+8*((t+1)&1),8)}, v11")
    def pld(t):
        if t < 9:
            ldA(t, 38+4*(t&1), f"p{t}"); ldW(t, (t+1)&1, f"p{t}")
        if t == 8: A("v_subrev_u32 v1, 73728, v1")
    pair(0); pld(2); A.nop(2)
    pk = [74, 76, 78, 46]
    for i in range(4):
        A(f"v_cvt_pk_bf16_f32 v{pk[i]}, v{50+4*i}, v{51+4*i}\nv_cvt_pk_bf16_f32 v{pk[i]+1}, v{52+4*i}, v{53+4*i}")
    for i in range(4):
        A(f"{M16} {R('v',50+4*i)}, {R('v',pk[i],2)}, v[12:13], 0")
    pair(1); pld(3); A.nop(1)
    pk = [74, 76, 46, 48]
    for i in range(4):
        A(f"v_cvt_pk_bf16_f32 v{pk[i]}, v{50+4*i}, v{51+4*i}\nv_cvt_pk_bf16_f32 v{pk[i]+1}, v{52+4*i}, v{53+4*i}")
    A.wm("kx")
    A(f"{M32} v[54:57], v[14:17], v[74:77], 0")
    A(f"{M32} v[58:61], v[18:21], v[74:77], 0")
    A(f"{M32} v[50:53], v[46:49], v[74:77], 0")
    A.m(f"buffer_load_dwordx4 v[14:17], v0, s[8:11], s37 offen", "vx")
    A.m(f"buffer_load_dwordx4 v[18:21], v0, s[8:11], s37 offen offset:1024", "vx")
    pair(2); pld(4)
    for r in range(4): A(f"v_cndmask_b32 v{62+r}, v{54+r}, v{58+r}, s[60:61]")
    for r in range(2): A(f"v_cndmask_b32 v{78+r}, v{50+r}, v{52+r}, s[60:61]")
    A.d("ds_write_b128 v3, v[62:65]", "sw"); A.d("ds_write_b64 v5, v[78:79]", "sw")
    A.m(f"buffer_store_dwordx4 v[46:49], v0, s[8:11], s38 offen {KVF}")
    if FLAGS: A("v_mov_b32 v54, s22"); A.m("buffer_store_byte v54, off, s[8:11], s81 sc1")
    pair(3); A.wd("sw"); A("s_barrier")
    stamp_(2)
    mr = [74, 76, 78, 46]
    for i in range(4):
        A.d(f"ds_read_b128 {R('v',50+4*i)}, v0 offset:{i*1280}", f"s{i}")
        A.d(f"ds_read_b64 {R('v',mr[i],2)}, v4 offset:{i*1280}", f"s{i}")
    pld(5); pair(4); pld(6)
    A.wd("s1")
    for r in range(4): A(f"v_add_f32 v{50+r}, v{50+r}, v{54+r}")
    for r in range(2): A(f"v_add_f32 v{74+r}, v{74+r}, v{76+r}")
    A.wd("s3")
    for r in range(4): A(f"v_add_f32 v{58+r}, v{58+r}, v{62+r}")
    for r in range(2): A(f"v_add_f32 v{78+r}, v{78+r}, v{46+r}")
    for r in range(4): A(f"v_add_f32 v{50+r}, v{50+r}, v{58+r}")
    for r in range(2): A(f"v_add_f32 v{74+r}, v{74+r}, v{78+r}")
    A("v_max3_f32 v54, v50, v51, v52\nv_max3_f32 v54, v54, v53, v74\nv_max_f32 v54, v54, v75")
    pair(5)
    A(f"v_max_f32_dpp v54, v54, v54 {DPP}\nv_mov_b32 v55, v54")
    pld(7)
    A("v_permlane16_swap_b32 v54, v55\nv_max_f32 v54, v54, v55\nv_mov_b32 v55, v54")
    pair(6)
    A("v_permlane32_swap_b32 v54, v55\nv_max_f32 v54, v54, v55\nv_mul_f32 v54, s76, v54")
    pld(8)
    for r in (50, 51, 52, 53, 74, 75): A(f"v_fma_f32 v{r}, v{r}, s76, -v54")
    pair(7)
    for r in (50, 51, 52, 53, 74, 75): A(f"v_exp_f32 v{r}, v{r}")
    pair(8)
    A("v_cvt_pk_bf16_f32 v54, v50, v51\nv_cvt_pk_bf16_f32 v55, v52, v53\nv_cvt_pk_bf16_f32 v58, v74, v75")
    for r in range(4): A(f"v_mov_b32 v{60+r}, s77")
    A(f"v_mov_b32_dpp v56, v54 {DPP}\nv_mov_b32_dpp v57, v55 {DPP}\nv_mov_b32_dpp v59, v58 {DPP}")
    A("v_cndmask_b32 v64, 0, v60, s[64:65]\nv_cndmask_b32 v65, 0, v60, s[64:65]")
    A.wm("vx")
    A(f"{M32} v[30:33], v[60:63], v[54:57], 0")
    A("v_cvt_pk_bf16_f32 v76, v66, v67\nv_cvt_pk_bf16_f32 v77, v68, v69")
    A(f"{M32} v[22:25], v[14:17], v[54:57], 0")
    A("v_cvt_pk_bf16_f32 v78, v70, v71\nv_cvt_pk_bf16_f32 v79, v72, v73")
    A(f"{M32} v[26:29], v[18:21], v[54:57], 0")
    A(f"{M16} v[30:33], v[64:65], v[58:59], v[30:33]")
    A(f"{M16} v[22:25], v[76:77], v[58:59], v[22:25]")
    A(f"{M16} v[26:29], v[78:79], v[58:59], v[26:29]")
    A.m(f"buffer_store_dwordx4 v[76:79], v0, s[8:11], s39 offen {KVF}")
    A(f"""s_cmp_eq_u32 s22, 63
    s_cbranch_scc1 CH_END
    v_lshrrev_b32 v67, 1, v0
    v_and_b32 v67, 0x180, v67
    v_and_b32 v66, 0xfffffc7f, v0
    v_or_b32 v67, v66, v67
    v_rcp_f32 v30, v30
    s_mov_b64 exec, s[62:63]""")
    for r in range(8): A(f"v_mul_f32 v{22+r}, v{22+r}, v30")
    for r in range(4): A(f"v_cvt_pk_bf16_f32 v{34+r}, v{22+2*r}, v{23+2*r}")
    A.d("ds_write_b64 v6, v[34:35]"); A.d("ds_write_b64 v6, v[36:37] offset:1024", "ow")
    A("s_mov_b64 exec, -1")
    for i in range(38, 48): A(f"v_mov_b32 v{i}, 0")
    A.wd("ow"); A("s_barrier")
    stamp_(3)
    A.d("ds_read_b128 v[30:33], v0 offset:5120", "o4"); A.d("ds_read_b128 v[34:37], v0 offset:6144", "o5")
    for k in range(4): A.d(f"ds_read_b128 {R('v',14+4*k)}, v67 offset:{5120+512*k}", f"o{k}")
    for i in range(48, 58): A(f"v_mov_b32 v{i}, 0")
    def wo(p, k): A(f"{SM} {R('v',38+4*p)}, {R('v',14+4*k)}, {R('v',80+72*(k>>1)+16*p+8*(k&1),8)}, v11")
    def quad(b, o):
        out = [f"v_cvt_pk_bf16_f32 v{o+r}, v{b+2*r}, v{b+2*r+1}" for r in range(4)]
        out += [f"v_and_or_b32 v{o+r}, v{o+r}, -2, s23" for r in range(4)]
        return out + ["s_nop 0", f"v_permlane16_swap_b32 v{o}, v{o+2}", f"v_permlane16_swap_b32 v{o+1}, v{o+3}"]
    t8 = ["s_nop 0", "s_nop 0", "s_nop 0"] + """v_permlane32_swap_b32 v54, v56
    v_permlane32_swap_b32 v55, v57
    v_add_f32 v54, v54, v56
    v_add_f32 v55, v55, v57
    v_cvt_pk_bf16_f32 v66, v54, v55
    v_and_or_b32 v66, v66, -2, s23""".split("\n") + [f"buffer_store_dword v66, v8, s[8:11], s32 offen {stf}"]
    A("s_nop 0")
    for t in range(2):
        A.wd(f"o{4+t}"); A(f"{SM} v[54:57], {R('v',30+4*t)}, {R('v',80+72*t+64,8)}, v11")
    for k in range(4):
        A.wd(f"o{k}"); wo(0, k); A(t8.pop(0))
        if k >= 2: A(t8.pop(0))
        wo(1, k); A(t8.pop(0))
    assert not t8
    q0 = ["s_nop 2", "s_nop 2"] + quad(38, 58) + [f"buffer_store_dwordx4 v[58:61], v7, s[8:11], s32 offen {stf}"]
    for k in range(4):
        for p in (2, 3):
            wo(p, k)
            for _ in range(2 if k else 1):
                if q0: A(q0.pop(0))
    assert not q0
    A.nop(5)
    for l in quad(46, 62): A(l)
    A(f"buffer_store_dwordx4 v[62:65], v7, s[8:11], s33 offen {stf}")
    stamp_(4)
    A(f"""s_add_u32 s36, s36, {0 if MODE == 3 else 262144}
    s_add_u32 s37, s37, {0 if MODE == 3 else 262144}
    s_add_u32 s38, s38, {0 if MODE == 2 else 131072}
    s_add_u32 s39, s39, {0 if MODE == 2 else 131072}
    s_add_u32 s22, s22, 1
    s_add_u32 s35, s35, {0 if MODE == 3 else 262144}
    s_mov_b32 s79, 0
    s_cmp_eq_u32 s78, 0
    s_cbranch_scc1 NORED{X}
    v_mov_b32 v34, 0x3f80
    v_mov_b32 v35, 0x3f800000
    v_cndmask_b32 v34, v34, v35, s[74:75]
    v_cndmask_b32 v30, 0, v34, s[66:67]
    v_cndmask_b32 v31, 0, v34, s[68:69]
    v_cndmask_b32 v32, 0, v34, s[70:71]
    v_cndmask_b32 v33, 0, v34, s[72:73]""")
    TO = f"s_add_u32 s79, s79, 1\ns_cmp_gt_u32 s79, 0x100000\ns_cbranch_scc1 CH_END"
    def issA(b):
        for i in range(4): A(f"buffer_load_dwordx4 {R('v',b+4*i)}, v0, s[8:11], s31 offen offset:{i*1024} sc1")
    def chkA(b):
        for i in range(4):
            A(f"s_waitcnt vmcnt({7-i})")
            A(f"{M32} v[34:37], v[30:33], {R('v',b+4*i)}, {'0' if i==0 else 'v[34:37]'}")
            for r in range(4):
                A(f"v_xor_b32 v14, s23, v{b}" if i+r == 0 else f"v_bitop3_b32 v14, v14, v{b+4*i+r}, s23 bitop3:0xf6")
        A(f"v_and_b32 v14, 1, v14\nv_cmp_ne_u32 vcc, 0, v14\ns_nop 0\ns_cbranch_vccz GOTA{X}")
    if DA: A(f"s_sleep {DA}")
    issA(38); A(f"s_sleep {DS}"); issA(54)
    A(f"POLLA{X}:")
    chkA(38); issA(38); chkA(54); issA(54); A(TO); A(f"s_branch POLLA{X}\nGOTA{X}:")
    for r in range(4): A(f"v_add_f32_dpp v{76+r}, v{34+r}, v{34+r} {DPP}")
    A(f"""v_cvt_pk_bf16_f32 v79, v78, v79
    v_cvt_pk_bf16_f32 v78, v76, v77
    v_and_or_b32 v78, v78, -2, s23
    s_mov_b64 exec, 0x00ff00ff
    buffer_store_dwordx2 v[78:79], v6, s[8:11], s30 offen {stf}
    s_mov_b64 exec, -1
    s_branch RED{X}
    NORED{X}:
    s_cmp_lt_u32 s20, 24
    s_cbranch_scc1 NOPF{X}""")
    if FLAGS: rdy(A, 38)
    A(f"""    v_lshlrev_b32 v38, 3, v0
    s_add_u32 s28, s35, {VF-KF}
    buffer_load_dword v38, s[8:11], s35 offen lds
    buffer_load_dword v38, s[8:11], s28 offen lds
    NOPF{X}:
    s_sleep {DN}
    RED{X}:""")
    stamp_(5)
    ldW(0, 0, "k0"); ldW(1, 1, "k1")
    if DB: A(f"s_sleep {DB}")
    def issB(b, c):
        A(f"""buffer_load_dwordx4 {R('v',b)}, v9, s[8:11], s34 offen sc1
        buffer_load_dwordx4 {R('v',b+4)}, v9, s[8:11], s34 offen offset:1024 sc1
        buffer_load_dwordx2 {R('v',c,2)}, v10, s[8:11], s34 offen sc1""")
    def chkB(b, c, lab):
        A(f"s_waitcnt vmcnt(3)\nv_xor_b32 v38, s23, v{b}")
        for r in (b+2, b+4, b+6, c): A(f"v_bitop3_b32 v38, v38, v{r}, s23 bitop3:0xf6")
        A(f"v_and_b32 v38, 1, v38\nv_cmp_ne_u32 vcc, 0, v38\ns_nop 0\ns_cbranch_vccz {lab}")
    def wrB(b, c):
        A(f"ds_write_b128 v9, {R('v',b)}\nds_write_b128 v9, {R('v',b+4)} offset:1024\nds_write_b64 v10, {R('v',c,2)}")
    issB(14, 74)
    A("s_waitcnt vmcnt(3)\ns_mov_b32 s79, 0")
    for i in range(50, 66): A(f"v_mov_b32 v{i}, 0")
    if DS > 1: A(f"s_sleep {DS-1}")
    issB(66, 76)
    A(f"POLLB{X}:")
    chkB(14, 74, f"GOTB1{X}"); issB(14, 74); chkB(66, 76, f"GOTB2{X}"); issB(66, 76); A(TO); A(f"s_branch POLLB{X}\nGOTB1{X}:")
    wrB(14, 74); A(f"s_branch GOTB{X}\nGOTB2{X}:"); wrB(66, 76)
    A(f"""GOTB{X}:
    s_xor_b32 s23, s23, 1
    s_waitcnt lgkmcnt(0)
    buffer_load_dwordx4 v[14:17], v0, s[8:11], s36 offen
    buffer_load_dwordx4 v[18:21], v0, s[8:11], s36 offen offset:1024""")
    if prof:
        stamp_(6)
        lb = A.lab("NP")
        A(f"s_waitcnt lgkmcnt(0)\ns_cmp_lg_u32 s22, 40\ns_cbranch_scc1 {lb}")
        for i in range(7): A(f"v_mov_b32 v{38+i}, s{80+2*i}")
        A(f"""s_lshl_b32 s28, s20, 2
        s_add_u32 s28, s28, s21
        s_lshl_b32 s28, s28, 5
        s_add_u32 s28, s28, {TS}
        v_mov_b32 v46, 0
        buffer_store_dwordx4 v[38:41], v46, s[8:11], s28 offen
        buffer_store_dwordx4 v[42:45], v46, s[8:11], s28 offen offset:16
        s_waitcnt vmcnt(0)
        {lb}:""")
    A(f"s_branch STEP{X}")
```

```python
from asmlib import *
M32 = "v_mfma_f32_16x16x32_bf16"
def lin(A, dst, lane, terms, tmp, add=None):
    first = True
    for sh, bits, mult in terms:
        t = dst if first else tmp
        A(f"v_bfe_u32 v{t}, v{lane}, {sh}, {bits}")
        if mult != 1: A(f"v_mul_u32_u24 v{t}, {mult}, v{t}")
        if not first: A(f"v_add_u32 v{dst}, v{dst}, v{tmp}")
        first = False
    if add is not None: A(f"v_add_u32 v{dst}, {add}, v{dst}")
class Op:
    def __init__(s, kind, srd, soff, pitch, nt, wt, wsel, flags=""):
        s.kind, s.srd, s.soff, s.pitch, s.nt, s.wt, s.wsel, s.flags = kind, srd, soff, pitch, nt, wt, wsel, flags
        s.SB = nt*2048; s.nd = nt//2; s.RB = nt*32
        s.adv = 2048 if kind == "fr" else 64*pitch
class Gemm:
    def __init__(s, A, ops, NS, vb, lane, sw, st, ldsbase=0):
        s.A, s.ops, s.NS, s.lane, s.sw, s.st = A, ops, NS, lane, sw, st
        off = ldsbase; s.ldsbase = ldsbase
        for o in ops: o.lo = off; off += o.SB
        s.SB = off - ldsbase
        for o in ops:
            o.vo = vb; vb += o.nd
        for o in ops:
            o.va = vb; vb += 1 if o.kind == "fr" else len(o.wt)
        vb += vb & 1
        s.nfr = sum(len(o.wt) for o in ops)
        s.fb = vb; vb += 8*s.nfr
        s.t0 = vb; s.t1 = vb+1; s.vend = vb+2
        s.ndma = sum(o.nd for o in ops)
    def setup_load(s):
        A, L, t0, t1, sw, st = s.A, s.lane, s.t0, s.t1, s.sw, s.st
        for o in s.ops:
            for j in range(o.nd):
                v = o.vo+j
                if o.kind == "fr":
                    A(f"s_mul_i32 s{st}, s{sw}, {o.nd}\ns_add_u32 s{st}, s{st}, {j}\ns_and_b32 s{st+1}, s{st}, 1\ns_lshr_b32 s{st}, s{st}, 1")
                    A(f"s_mul_i32 s{st}, s{st}, {o.pitch}\ns_lshl_b32 s{st+1}, s{st+1}, 10\ns_add_u32 s{st}, s{st}, s{st+1}")
                    A(f"v_lshl_add_u32 v{v}, v{L}, 4, s{st}")
                else:
                    cpr = o.RB//16
                    A(f"v_add_u32 v{t1}, {64*j}, v{L}\nv_mul_u32_u24 v{t0}, {-(-65536//cpr)}, v{t1}\nv_lshrrev_b32 v{t0}, 16, v{t0}")
                    A(f"v_mul_u32_u24 v{v}, {cpr}, v{t0}\nv_sub_u32 v{t1}, v{t1}, v{v}")
                    sh, bits = {256: (0, 3), 128: (1, 2), 192: (2, 1)}[o.RB]
                    A(f"v_bfe_u32 v{v}, v{t0}, {sh}, {bits}\nv_lshlrev_b32 v{v}, 1, v{v}\nv_xor_b32 v{t1}, v{t1}, v{v}")
                    A(f"s_lshl_b32 s{st}, s{sw}, 4\nv_add_u32 v{t0}, s{st}, v{t0}\nv_mul_u32_u24 v{t0}, {o.pitch}, v{t0}\nv_lshl_add_u32 v{v}, v{t1}, 4, v{t0}")
    def setup_comp(s):
        A, L, t0, t1, st = s.A, s.lane, s.t0, s.t1, s.st
        for o in s.ops:
            if o.kind == "fr":
                if o.wsel is None: A(f"s_mov_b32 s{st}, {o.lo}")
                else: A(f"s_lshl_b32 s{st}, s{o.wsel}, 11\ns_add_u32 s{st}, s{st}, {o.lo}")
                A(f"v_lshl_add_u32 v{o.va}, v{L}, 4, s{st}")
            else:
                sh, bits = {256: (0, 3), 128: (1, 2), 192: (2, 1)}[o.RB]
                lin(A, t0, L, [(2, 4, o.RB), (0, 2, 8)], t1, o.lo)
                for i, t in enumerate(o.wt):
                    A(f"s_add_u32 s{st}, s{o.wsel}, {t}\nv_bfe_u32 v{t1}, v{L}, {2+sh}, {bits}\nv_xor_b32 v{t1}, s{st}, v{t1}")
                    A(f"v_lshl_add_u32 v{o.va+i}, v{t1}, 5, v{t0}")
    def dma(s, buf):
        out = []
        for o in s.ops:
            for j in range(o.nd):
                pre = f"s_mul_i32 s{s.st}, s{s.sw}, {o.nd*1024}\n" if j == 0 else ""
                post = f"\ns_add_u32 s{o.soff}, s{o.soff}, {o.adv}" if j == o.nd-1 else ""
                out.append(f"{pre}s_add_u32 m0, s{s.st}, {o.lo+buf*s.SB+j*1024}\ns_nop 0\nbuffer_load_dwordx4 v{o.vo+j}, s[{o.srd}:{o.srd+3}], s{o.soff} offen {o.flags} lds{post}")
        return out
    def frag(s, o, i, ks):
        k = sum(len(p.wt) for p in s.ops[:s.ops.index(o)]) + i
        return s.fb + 4*(k + s.nfr*ks)
    def reads(s, ks):
        out = []
        for o in s.ops:
            for i, t in enumerate(o.wt):
                f = s.frag(o, i, ks)
                if o.kind == "fr": out.append(f"ds_read_b128 {R('v',f)}, v{o.va} offset:{(2*t+ks)*1024}")
                else:
                    for q in range(2): out.append(f"ds_read_b64_tr_b16 {R('v',f+2*q,2)}, v{o.va+i} offset:{(32*ks+16*q)*o.RB}")
        return out
    def adv(s, b):
        d = s.SB if b < s.NS-1 else -(s.NS-1)*s.SB
        return [f"v_add_u32 v{o.va+i}, {d & 0xffffffff}, v{o.va+i}" for o in s.ops for i in range(1 if o.kind == 'fr' else len(o.wt))]
    def mix(s, mf, other):
        A = s.A; n = len(mf); k = 0
        for i, m in enumerate(mf):
            A(m)
            while k < len(other) and k*n < (i+1)*len(other): A(other[k]); k += 1
    def run(s, nst, mfmas, mode, scnt, wait=None):
        A, NS = s.A, s.NS
        ld, cp = mode != "comp", mode != "load"
        if wait:
            n0 = s.ops[0].nd; A("s_barrier")
            for b in range(NS):
                for l in s.dma(b)[n0:]: A(l)
            wait()
            for b in range(NS):
                for l in s.dma(b)[:n0]: A(l)
            A(f"s_waitcnt vmcnt({(NS-1)*n0})")
        elif ld:
            for b in range(NS):
                for l in s.dma(b): A(l)
            A(f"s_waitcnt vmcnt({(NS-1)*s.ndma})")
        A("s_barrier")
        if cp:
            for l in s.reads(0): A(l)
        def stage(b, issue, infl, last=False):
            if cp:
                A("s_waitcnt lgkmcnt(0)"); s.mix(mfmas(0), s.reads(1) + s.adv(b)); A("s_waitcnt lgkmcnt(0)")
            if not last:
                if ld: A(f"s_waitcnt vmcnt({int(round(infl*s.ndma))})")
                A("s_barrier")
            oth = (s.reads(0) if cp and not last else []) + (s.dma(b) if ld and issue else [])
            if cp: s.mix(mfmas(1), oth)
            else:
                for l in oth: A(l)
        nmain = nst - NS; nit = nmain // NS; assert not wait or nit == 0 or NS == 2
        if nit:
            lb = A.lab("GL")
            A(f"s_mov_b32 s{scnt}, {nit}\n{lb}:")
            for b in range(NS): stage(b, True, NS-2)
            A(f"s_sub_u32 s{scnt}, s{scnt}, 1\ns_cmp_lg_u32 s{scnt}, 0\ns_cbranch_scc1 {lb}")
        for kt in range(nit*NS, nst):
            infl = min(NS-2, nst-kt-2)
            if wait and kt+1 < NS:
                assert nit == 0
                infl = ((NS-2-kt)*s.ops[0].nd + min(kt, nmain)*s.ndma)/s.ndma
            stage(kt % NS, kt < nmain, infl, kt == nst-1)
        if cp and nst % NS:
            for o in s.ops:
                for i in range(1 if o.kind == 'fr' else len(o.wt)):
                    A(f"v_subrev_u32 v{o.va+i}, {(nst % NS)*s.SB}, v{o.va+i}")
```

```python
from asmlib import *
from gemm import *
M16 = "v_mfma_f32_16x16x16_bf16"
def pro(A):
    A("""v_lshrrev_b32 v1, 6, v0
    v_and_b32 v0, 63, v0
    s_load_dwordx4 s[52:55], s[0:1], 104
    v_readfirstlane_b32 s21, v1
    s_waitcnt lgkmcnt(0)""")
    A.srd(8, 54, WSZ); A.srd(16, 52, 256)
def insrd(A, r, koff, size):
    A(f"s_load_dwordx2 s[{r}:{r+1}], s[0:1], {koff}\ns_mov_b32 s{r+2}, {size}\ns_mov_b32 s{r+3}, 0x00020000")
def rsum(A, v, t):
    for k in (8, 4, 2, 1):
        A(f"s_nop 1\nv_add_f32_dpp v{v}, v{v}, v{v} row_ror:{k} row_mask:0xf bank_mask:0xf")
PP = 0x8000000; PST = 2048*2304
def ln(A, second, sf="", lf="", part=None):
    A("s_lshl_b32 s44, s20, 2" if part else "s_lshl_b32 s44, s20, 4\ns_lshl_b32 s45, s21, 2\ns_add_u32 s44, s44, s45")
    A(f"""v_lshrrev_b32 v1, 4, v0
    v_add_u32 v2, s44, v1
    v_mul_u32_u24 v2, 1152, v2
    v_and_b32 v3, 15, v0
    v_lshl_add_u32 v2, v3, 3, v2""")
    if second: A(f"s_mov_b32 s44, {HH}\ns_mov_b32 s45, {HN}"); src = "s[8:11], s44"
    else:
        insrd(A, 12, 0, 2359296); src = "s[12:15], 0"
        lin(A, 3, 0, [(3, 1, 1024), (2, 1, 8), (0, 2, 256), (4, 2, 16)], 4)
        A(f"s_mul_i32 s44, s20, 18432\ns_lshl_b32 s45, s21, 6\ns_add_u32 s45, s45, s44\ns_add_u32 s45, s45, {XN}\ns_waitcnt lgkmcnt(0)")
    if part:
        insrd(A, 12, 0, 2359296); src = "s[12:15], 0"
        A(f"v_lshlrev_b32 v3, 1, v2\ns_mov_b32 s46, {PP}\ns_waitcnt lgkmcnt(0)")
    for i in range(9): A(f"buffer_load_dwordx2 v[{10+2*i}:{11+2*i}], v2, {src} offen offset:{128*i} {lf}")
    if part:
        def pl(k):
            for i in range(9): A(f"buffer_load_dwordx4 {R('v',66+36*(k%5)+4*i)}, v3, s[8:11], s46 offen offset:{256*i}")
            A(f"s_add_u32 s46, s46, {PST}")
        part(); [pl(k) for k in range(5)]
        for k in range(18): A(f"v_lshlrev_b32 v{30+2*k}, 16, v{10+k}\nv_and_b32 v{31+2*k}, 0xffff0000, v{10+k}")
        for k in range(8):
            A(f"s_waitcnt vmcnt({9*min(4, 7-k)})")
            for i in range(18): A(f"v_pk_add_f32 {R('v',30+2*i,2)}, {R('v',30+2*i,2)}, {R('v',66+36*(k%5)+2*i,2)}")
            if k < 3: pl(k+5)
        for k in range(18): A(f"v_cvt_pk_bf16_f32 v{10+k}, v{30+2*k}, v{31+2*k}")
        for i in range(9): A(f"buffer_store_dwordx2 v[{10+2*i}:{11+2*i}], v2, s[8:11], s44 offen offset:{128*i}")
    A(f"s_mov_b32 s46, {f2u(1/576)}\ns_mov_b32 s47, {f2u(1e-5)}")
    for p in range(2 if second else 1):
        for k in range(18):
            if p == 0 and k % 2 == 0 and not part: A(f"s_waitcnt vmcnt({8-k//2})")
            A(f"v_lshlrev_b32 v{30+2*k}, 16, v{10+k}\nv_and_b32 v{31+2*k}, 0xffff0000, v{10+k}")
            if k: A(f"v_pk_add_f32 v[4:5], v[{'4:5' if k > 1 else '30:31'}], v[{30+2*k}:{31+2*k}]")
        A("v_add_f32 v4, v4, v5"); rsum(A, 4, 5)
        A("v_mul_f32 v4, s46, v4\nv_mov_b32 v6, 0\nv_mov_b32 v7, 0\nv_mov_b32 v5, v4")
        for k in range(18):
            r = f"v[{30+2*k}:{31+2*k}]"
            A(f"v_pk_add_f32 {r}, {r}, v[4:5] neg_lo:[0,1] neg_hi:[0,1]\nv_pk_fma_f32 v[6:7], {r}, {r}, v[6:7]")
        A("v_add_f32 v6, v6, v7"); rsum(A, 6, 7)
        A("v_mov_b32 v7, s47\nv_fma_f32 v6, v6, s46, v7\nv_rsq_f32 v6, v6\ns_nop 0\nv_mov_b32 v7, v6")
        for k in range(18):
            r = f"v[{30+2*k}:{31+2*k}]"
            A(f"v_pk_mul_f32 {r}, {r}, v[6:7]\nv_cvt_pk_bf16_f32 v{10+k}, v{30+2*k}, v{31+2*k}")
    for i in range(9):
        if second: A(f"buffer_store_dwordx2 v[{10+2*i}:{11+2*i}], v2, s[8:11], s45 offen offset:{128*i} {sf}")
        else:
            A(f"buffer_store_dwordx2 v[{10+2*i}:{11+2*i}], v3, s[8:11], s45 offen offset:{2048*(i&1)} {sf}")
            if i & 1: A("s_add_u32 s45, s45, 4096")
class StA:
    def __init__(s, A, lf=""):
        s.A = A
        s.x = Op('fr', 8, 40, 18432, 8, list(range(8)), None, lf)
        s.w = [Op('tr', r, 41+i, 8192, 8, [0, 4], 21) for i, r in enumerate((12, 24, 28))]
        s.g = Gemm(A, [s.x]+s.w, 2, 2, 0, 21, 44)
    def setup(s):
        for i, r in enumerate((12, 24, 28)): insrd(s.A, r, 16+8*i, 4718592)
        s.g.setup_load(); s.g.setup_comp(); s.A("v_lshlrev_b32 v1, 4, v0\ns_waitcnt lgkmcnt(0)")
    def item(s, sf="", wait=None):
        A, g = s.A, s.g
        A(f"s_lshr_b32 s22, s20, 5\ns_and_b32 s23, s20, 31\ns_mul_i32 s40, s22, {8*18432}\ns_add_u32 s40, s40, {XN}\ns_lshl_b32 s41, s23, 8\ns_mov_b32 s42, s41\ns_mov_b32 s43, s41")
        for i in range(192): A(f"v_accvgpr_write_b32 a{i}, 0")
        acc = lambda op, t, j: ((op*8+t)*2+j)*4
        def mf(ks):
            o = []
            for op in range(3):
                for j in range(2):
                    for t in range(8):
                        a, b = R('v', g.frag(s.w[op], j, ks)), R('v', g.frag(s.x, t, ks))
                        if op == 2: a, b = b, a
                        c = R('a', acc(op, t, j)); o.append(f"{M32} {c}, {a}, {b}, {c}")
            return o
        g.run(9, mf, "both", 46, wait)
        A(f"s_lshl_b32 s22, s22, 20\ns_lshl_b32 s23, s23, 13\ns_add_u32 s22, s22, s23\ns_lshl_b32 s23, s21, 11\ns_add_u32 s22, s22, s23\ns_nop 7")
        n = 0
        for op, base in ((1, KF), (2, VF), (0, QF)):
            for sg in range(4):
                A(f"s_add_u32 s44, s22, {base + sg*262144}")
                for u in range(2):
                    p = (acc(op, 2*sg+u, 0), acc(op, 2*sg+u, 1)) if op < 2 else (acc(op, 2*sg, u), acc(op, 2*sg+1, u))
                    t = g.fb + 12*(n % 8); n += 1
                    for i in range(8): A(f"v_accvgpr_read_b32 v{t+i}, a{p[i>>2]+(i&3)}")
                    for i in range(4): A(f"v_cvt_pk_bf16_f32 v{t+8+i}, v{t+2*i}, v{t+2*i+1}")
                    A(f"buffer_store_dwordx4 {R('v',t+8)}, v1, s[8:11], s44 offen offset:{u*1024} {sf}")
def xred(A, op, a, b):
    for pl in ("v_permlane16_swap_b32", "v_permlane32_swap_b32"):
        for x, y in zip(a, b): A(f"v_mov_b32 v{y}, v{x}")
        A("s_nop 1")
        for x, y in zip(a, b): A(f"{pl} v{x}, v{y}")
        for x, y in zip(a, b): A(f"{op} v{x}, v{x}, v{y}")
def stC(A, lf="", mf="", sf="", wait=None):
    A(f"""v_lshlrev_b32 v1, 4, v0
    s_lshl_b32 s44, s22, 17
    s_lshl_b32 s45, s23, 12
    s_add_u32 s44, s44, s45
    s_lshl_b32 s45, s44, 1""")
    def ld(reg, n, base, sr, fl):
        for i in range(n):
            if i % 4 == 0: A(f"s_add_u32 s46, s{sr}, {base + i*1024}")
            A.m(f"buffer_load_dwordx4 {R('v', reg+4*i)}, v1, s[8:11], s46 offen offset:{(i%4)*1024} {fl}", reg)
    A.vm = []
    ld(8, 8, QF, 45, lf); ld(40, 8, KF, 45, lf); ld(88, 8, VF, 45, lf)
    A("v_and_b32 v2, 15, v0\nv_lshrrev_b32 v3, 4, v0\nv_lshlrev_b32 v3, 2, v3\nv_sub_u32 v2, v2, v3")
    for r in range(4): A(f"v_cmp_le_i32_e64 s[{60+2*r}:{61+2*r}], {r}, v2")
    A(f"v_mov_b32 v3, {f2u(-1e30)}\ns_mov_b32 s47, {f2u(128**-0.5*1.4426950408889634)}")
    S = {("m",0):136, ("m",1):140, (0,0):144, (0,1):148, (1,1):152}
    for tags, keys in (((40,), [(0,0),(0,1),(1,1)]), ((72,), [("m",0),("m",1)])):
        if tags == (72,): wait(); A.vm = []; ld(72, 4, KM, 44, mf); ld(120, 4, VM, 44, mf)
        A.wm(*tags)
        for w in range(4):
            for k, q in keys:
                a = 72+4*w if k == "m" else 40+4*(2*w+k); c = R('v', S[k,q])
                A(f"{M32} {c}, {R('v',a)}, {R('v',8+4*(2*w+q))}, {c if w else 0}")
    A.nop(8)
    for r in range(4): A(f"v_cndmask_b32_e64 v{144+r}, v3, v{144+r}, s[{60+2*r}:{61+2*r}]\nv_cndmask_b32_e64 v{152+r}, v3, v{152+r}, s[{60+2*r}:{61+2*r}]")
    T = {0: [136+i for i in range(4)]+[144+i for i in range(4)], 1: [140+i for i in range(4)]+[148+i for i in range(8)]}
    for q in (0, 1):
        t = T[q]; A(f"v_max_f32 v{4+q}, v{t[0]}, v{t[1]}")
        for i in range(2, len(t), 2): A(f"v_max3_f32 v{4+q}, v{t[i]}, v{t[i+1]}, v{4+q}")
    xred(A, "v_max_f32", [4, 5], [6, 7])
    A("v_mul_f32 v4, s47, v4\nv_mul_f32 v5, s47, v5")
    for q in (0, 1):
        for x in T[q]: A(f"v_fma_f32 v{x}, v{x}, s47, -v{4+q}")
        for x in T[q]: A(f"v_exp_f32 v{x}, v{x}")
    for q in (0, 1):
        t = T[q]; A(f"v_add_f32 v{4+q}, v{t[0]}, v{t[1]}\nv_add_f32 v6, v{t[2]}, v{t[3]}\nv_add_f32 v{4+q}, v{4+q}, v6\nv_mul_f32 v{4+q}, 0.5, v{4+q}")
        for x in t[4:]: A(f"v_add_f32 v{4+q}, v{4+q}, v{x}")
    xred(A, "v_add_f32", [4, 5], [6, 7])
    A("v_rcp_f32 v4, v4\nv_rcp_f32 v5, v5\nv_mov_b32 v162, 0\nv_mov_b32 v163, 0")
    for q in (0, 1):
        t = T[q]
        for x in t: A(f"v_mul_f32 v{x}, v{4+q}, v{x}")
        d = [156+2*q, 157+2*q] + [160+4*q+i for i in range(4)]
        for i in range(len(t)//2): A(f"v_cvt_pk_bf16_f32 v{d[i]}, v{t[2*i]}, v{t[2*i+1]}")
    A("s_waitcnt vmcnt(0)\ns_nop 0")
    for et in range(8):
        for q in (0, 1): A(f"{M16} {R('v',8+4*(2*et+q))}, {R('v',120+4*(et&3)+2*(et>>2),2)}, {R('v',156+2*q,2)}, 0")
    for et in range(8):
        for q in (0, 1): c = R('v',8+4*(2*et+q)); A(f"{M32} {c}, {R('v',88+4*(2*(et&3)+(et>>2)))}, {R('v',160+4*q)}, {c}")
    A(f"""s_lshl_b32 s44, s21, 12
    v_add_u32 v2, s44, v1
    s_mul_i32 s44, s74, {PST}
    s_mul_i32 s45, s22, {32*2304}
    s_add_u32 s44, s44, s45
    s_mul_i32 s45, s93, 768
    s_add_u32 s44, s44, s45
    s_mul_i32 s45, s21, 192
    s_add_u32 s44, s44, s45
    s_add_u32 s44, s44, {PP}
    s_add_u32 s45, s44, {16*2304}""")
    for p in range(4):
        for q in (0, 1):
            t = 72+4*(2*p+q)
            for i in range(4): x = 8+4*(2*(2*p+(i>>1))+q)+2*(i&1); A(f"v_cvt_pk_bf16_f32 v{t+i}, v{x}, v{x+1}")
            A(f"ds_write_b128 v2, {R('v',t)} offset:{q*16384+p*1024}")
    lin(A, 2, 0, [(0, 4, 2304), (4, 2, 16)], 3)
    A("s_waitcnt lgkmcnt(0)\ns_barrier"); A.ds = []
    rd = lambda k: [A.d(f"ds_read_b128 {R('v',8+8*k+4*q)}, v1 offset:{q*16384+k*1024}", k) for q in (0, 1)]
    for k in range(4): rd(k)
    for k in range(16):
        if k+4 < 16: rd(k+4)
        A.wd(k)
        for i in range(3):
            for q in (0, 1): c = R('v',136+4*(2*i+q)); A(f"{M32} {c}, {R('a',4*(16*i+k))}, {R('v',8+8*k+4*q)}, {c if k else 0}")
    A.nop(8)
    for i in range(3):
        for q in (0, 1): A(f"buffer_store_dwordx4 {R('v',136+4*(2*i+q))}, v2, s[8:11], s{44+q} offen offset:{64*i} {sf}")
def woinit(A):
    o = [Op('tr', 12, 40+i, 1152, 6, [0,1,2], 48) for i in range(2)]
    g = Gemm(A, o, 4, 2, 0, 21, 44); insrd(A, 12, 40, 4718592)
    A(f"s_mul_i32 s40, s74, {512*1152}\ns_mul_i32 s41, s93, 384\ns_add_u32 s40, s40, s41\ns_add_u32 s41, s40, 192\ns_and_b32 s48, s21, 1\ns_mul_i32 s48, s48, 3")
    g.setup_load(); g.setup_comp()
    A("s_lshr_b32 s44, s21, 1\ns_mul_i32 s44, s44, 12288\ns_waitcnt lgkmcnt(0)")
    for i in range(3): A(f"v_add_u32 v{o[0].va+i}, s44, v{o[0].va+i}\nv_add_u32 v{o[1].va+i}, 49152, v{o[0].va+i}")
    for rnd in range(2):
        A("s_barrier")
        for b in range(4):
            for l in g.dma(b): A(l)
        A("s_waitcnt vmcnt(0)\ns_barrier")
        for b in range(4):
            for ks in range(2):
                for i in range(3):
                    for q in range(2): A(f"ds_read_b64_tr_b16 {R('a',4*(16*i+8*rnd+2*b+ks)+2*q,2)}, v{o[b>>1].va+i} offset:{(b&1)*24576+(32*ks+16*q)*192}")
        A("s_waitcnt lgkmcnt(0)")
def stDF(A, F, NS=6, lf="", sf="", part=False, wait=None):
    if F:
        d = Op('fr', 8, 41, 147456, 6, [0,1,2], 48, lf); t = Op('tr', 12, 40, 4096, 4, [0,1], 47)
        insrd(A, 12, 80, 18874368); insrd(A, 24, 88, 4096); insrd(A, 28, 96, 2359296)
        A(f"s_lshl_b32 s40, s22, 7\ns_mul_i32 s41, s23, {6*147456}\ns_add_u32 s41, s41, {UU}")
    else:
        d = Op('tr', 12, 41, 1152, 6, [0,1,2], 48); t = Op('fr', 8, 40, 131072, 4, [0,1], 47, lf)
        insrd(A, 12, 40, 4718592); insrd(A, 24, 0, 2359296)
        A(f"s_lshl_b32 s40, s22, 19\ns_add_u32 s40, s40, {OF}\ns_mul_i32 s41, s23, 192")
    if part: A(f"s_lshl_b32 s44, s19x, 14\ns_add_u32 s40, s40, s44\ns_mul_i32 s44, s19x, {512*1152}\ns_add_u32 s41, s41, s44".replace("s19x", "s74"))
    g = Gemm(A, [t, d], NS, 64, 0, 21, 44)
    A(f"""s_and_b32 s47, s21, 1
    s_lshl_b32 s47, s47, 1
    s_lshr_b32 s48, s21, 1
    s_mul_i32 s48, s48, 3
    s_lshl_b32 s44, s22, 2
    s_add_u32 s44, s44, s47
    s_lshl_b32 s44, s44, 4
    v_and_b32 v2, 15, v0
    v_add_u32 v2, s44, v2
    v_lshlrev_b32 v4, 1, v2
    v_mul_u32_u24 v2, 1152, v2
    s_mul_i32 s44, s23, 192
    s_lshl_b32 s45, s48, 5
    s_add_u32 s44, s44, s45
    v_lshrrev_b32 v3, 4, v0
    v_lshl_add_u32 v2, v3, 3, v2
    v_add_u32 v2, s44, v2
    v_add_u32 v3, 18432, v2
    s_mov_b32 s49, {HH}""")
    g.setup_load(); g.setup_comp(); A("s_waitcnt lgkmcnt(0)")
    for i in range(0 if part else 3):
        for j in range(2): A(f"buffer_load_dwordx2 {R('v',8+2*(2*i+j),2)}, v{2+j}, {'s[8:11], s49' if F else 's[24:27], 0'} offen offset:{32*i} {lf if F else ''}")
    if F: A("buffer_load_ushort v5, v4, s[24:27], 0 offen\nbuffer_load_ushort v6, v4, s[24:27], 0 offen offset:32")
    for i in range(24): A(f"v_mov_b32 v{24+i}, 0")
    mf = lambda ks: [f"{M32} {R('v',24+4*(2*i+j))}, {R('v',g.frag(d,i,ks))}, {R('v',g.frag(t,j,ks))}, {R('v',24+4*(2*i+j))}" for i in range(3) for j in range(2)]
    g.run(72 if F else 8 if part else 64, mf, "both", 46, wait)
    if part:
        A(f"s_mul_i32 s49, s74, {PST}\ns_add_u32 s49, s49, {PP}\nv_lshlrev_b32 v2, 1, v2\nv_lshlrev_b32 v3, 1, v3\ns_nop 4")
        for i in range(3):
            for j in range(2): A(f"buffer_store_dwordx4 {R('v',24+4*(2*i+j))}, v{2+j}, s[8:11], s49 offen offset:{64*i} {sf}")
        return
    if F: A("v_lshlrev_b32 v5, 16, v5\nv_lshlrev_b32 v6, 16, v6")
    A("s_nop 7")
    for i in range(3):
        for j in range(2):
            c = 24+4*(2*i+j); r = 8+2*(2*i+j)
            for k in range(4):
                if F: A(f"v_add_f32 v{c+k}, v{5+j}, v{c+k}")
                A((f"v_and_b32 v20, 0xffff0000, v{r+(k>>1)}" if k & 1 else f"v_lshlrev_b32 v20, 16, v{r+(k>>1)}") + f"\nv_add_f32 v{c+k}, v20, v{c+k}")
            A(f"v_cvt_pk_bf16_f32 v{r}, v{c}, v{c+1}\nv_cvt_pk_bf16_f32 v{r+1}, v{c+2}, v{c+3}")
            A(f"buffer_store_dwordx2 {R('v',r,2)}, v{2+j}, {'s[28:31], 0' if F else 's[8:11], s49'} offen offset:{32*i} {sf}")
    return g.SB*NS
def stE(A, body, sf=""):
    h = Op('tr', 8, 70, 1152, 6, [0,1,2], 73); w = Op('tr', 56, 71, 9216, 8, [0,1,2,3], 72)
    insrd(A, 56, 64, 18874368)
    g = Gemm(A, [h, w], 2, 176, 0, 21, 44, 106496)
    A(f"""s_mul_i32 s70, s69, 192
    s_add_u32 s70, s70, {HN}
    s_lshl_b32 s71, s68, 8
    s_and_b32 s72, s21, 1
    s_lshl_b32 s72, s72, 2
    s_lshr_b32 s73, s21, 1
    s_mul_i32 s73, s73, 3
    s_lshl_b32 s44, s72, 5
    s_add_u32 s44, s44, s71
    v_lshrrev_b32 v2, 4, v0
    v_lshl_add_u32 v250, v2, 3, s44""")
    g.setup_load(); g.setup_comp(); A("s_waitcnt lgkmcnt(0)")
    for i in range(48): A(f"v_accvgpr_write_b32 a{192+i}, 0")
    mf = lambda ks: [f"{M32} {R('a',192+4*(3*i+j))}, {R('v',g.frag(w,i,ks))}, {R('v',g.frag(h,j,ks))}, {R('a',192+4*(3*i+j))}" for i in range(4) for j in range(3)]
    body(lambda wait: g.run(2, mf, "both", 46, wait))
    insrd(A, 24, 72, 9216); A("v_lshlrev_b32 v1, 4, v0\ns_waitcnt lgkmcnt(0)")
    for i in range(4): A(f"buffer_load_dwordx2 {R('v',8+2*i,2)}, v250, s[24:27], 0 offen offset:{32*i}")
    for i in range(48): A(f"v_accvgpr_read_b32 v{24+i}, a{192+i}")
    A("s_waitcnt vmcnt(0)")
    c0 = -2*0.7978845608028654*1.4426950408889634
    A(f"""s_mul_i32 s44, s69, 6
    s_add_u32 s44, s44, s73
    s_mul_i32 s44, s44, 147456
    s_lshl_b32 s45, s68, 3
    s_add_u32 s45, s45, s72
    s_lshl_b32 s45, s45, 9
    s_add_u32 s44, s44, s45
    s_add_u32 s44, s44, {UU}
    s_mov_b32 s45, {f2u(c0*0.044715)}
    v_mov_b32 v3, {f2u(c0)}""")
    b = g.fb
    for i in range(8): A(f"v_lshlrev_b32 v{b+2*i}, 16, v{8+i}\nv_and_b32 v{b+2*i+1}, 0xffff0000, v{8+i}")
    for j in range(3):
        for p in range(2):
            u = [24+4*(3*(2*p+(k>>2))+j)+(k&3) for k in range(8)]; t = [16+k for k in range(8)]
            for k in range(8): A(f"v_add_f32 v{u[k]}, v{b+8*p+k}, v{u[k]}\nv_mul_f32 v{t[k]}, v{u[k]}, v{u[k]}\nv_fma_f32 v{t[k]}, v{t[k]}, s45, v3\nv_mul_f32 v{t[k]}, v{t[k]}, v{u[k]}")
            for op in ("v_exp_f32 v{t}, v{t}", "v_add_f32 v{t}, 1.0, v{t}", "v_rcp_f32 v{t}, v{t}", "v_mul_f32 v{u}, v{t}, v{u}"):
                for k in range(8): A(op.format(t=t[k], u=u[k]))
            o = b+16+4*(2*j+p)
            for k in range(4): A(f"v_cvt_pk_bf16_f32 v{o+k}, v{u[2*k]}, v{u[2*k+1]}")
            A(f"buffer_store_dwordx4 {R('v',o)}, v1, s[8:11], s44 offen offset:{p*1024} {sf}")
        A("s_add_u32 s44, s44, 147456")
```

```python
from mk import *
SE = int(sys.argv[2]) if len(sys.argv) > 2 else 8
SW = 13
SC = int(sys.argv[3]) if len(sys.argv) > 3 else 8
def wait(A, off, sh, bits, full, srd='s[16:19]', io=0, SL=8, bar=True):
    l = A.lab("W")
    if bar: A(f"s_cmp_lg_u32 s21, 0\ns_cbranch_scc1 {l}_ok")
    A(f"""s_mov_b32 s79, 0
    {l}:
    buffer_load_dword v251, off, {srd}, s{off} offset:{io} sc1
    s_add_u32 s79, s79, 1
    s_cmp_gt_u32 s79, 0x40000
    s_cbranch_scc1 BG_END
    s_waitcnt vmcnt(0)
    v_readfirstlane_b32 s78, v251
    s_bfe_u32 s78, s78, {hex(sh | bits << 16)}
    s_cmp_eq_u32 s78, {full}
    s_cbranch_scc1 {l}_ok
    s_sleep {SL}
    s_branch {l}
    {l}_ok:""")
    if bar: A("s_barrier")
def signal(A, off, inc, bar=True, srd='s[16:19]', io=0):
    l = A.lab("S")
    A("s_waitcnt vmcnt(0)" + ("\ns_barrier" if bar else ""))
    A(f"""s_cmp_lg_u32 s21, 0
    s_cbranch_scc1 {l}
    v_mov_b32 v251, {inc}
    s_mov_b64 exec, 1
    buffer_atomic_add v251, off, {srd}, s{off} offset:{io} sc1
    s_mov_b64 exec, -1
    {l}:""")
def sr(A, idx, r, w=0):
    if DBG: A(f"s_sub_u32 s92, s77, {r}\ns_sub_u32 s90, s21, {w}\ns_or_b32 s92, s92, s90"); stamp(A, idx, "s92", 251)
def bg(A):
    st.pro(A)
    A("""s_sub_u32 s3, s3, 1
    s_lshr_b32 s4, s2, 3
    s_lshl_b32 s76, s3, 5
    s_add_u32 s76, s76, s4
    s_mul_i32 s77, s4, 7
    s_add_u32 s77, s77, s3
    s_cmp_ge_u32 s77, 128
    s_cbranch_scc1 NOLN0
    s_mov_b32 s20, s77""")
    st.ln(A, False, "sc1")
    A("s_lshr_b32 s75, s77, 3\ns_lshl_b32 s75, s75, 2\ns_add_u32 s75, s75, 8"); signal(A, 75, 1)
    A("NOLN0:"); a = st.StA(A); a.setup()
    A("s_mul_i32 s5, s76, 293\ns_lshr_b32 s5, s5, 11\ns_mul_i32 s6, s5, 7\ns_sub_u32 s6, s76, s6\nALOOP:\ns_lshl_b32 s75, s6, 2\ns_add_u32 s75, s75, 8\ns_lshl_b32 s20, s6, 5\ns_add_u32 s20, s20, s5")
    a.item("sc1", lambda: wait(A, 75, 0, 4, 8)); signal(A, 75, 16); stamp(A, 22, "s20", 251)
    A("s_add_u32 s6, s6, 7\ns_cmp_lt_u32 s6, 16\ns_cbranch_scc1 ALOOP\ns_sub_u32 s76, s76, s3\ns_cmp_lt_u32 s77, 216\ns_cbranch_scc1 HASE")
    W = "s[8:11]"
    A("s_mov_b32 s6, 0"); wait(A, 6, 0, 8, 32)
    A(f"""LLOOP:
    s_lshl_b32 s5, s6, 2
    s_add_u32 s5, s5, s21
    s_lshl_b32 s20, s5, 3
    s_add_u32 s20, s20, s77
    s_sub_u32 s20, s20, 216
    s_lshl_b32 s75, s5, 7
    s_add_u32 s75, s75, {FL+4096}""")
    st.ln(A, True, "sc1", part=lambda: (wait(A, 75, 0, 8, 24, W, 0, 2, False), sr(A, 30, 216, 3)))
    A(f"""s_lshl_b32 s75, s6, 10
    s_add_u32 s75, s75, {FL+12288}
    v_lshlrev_b32 v2, 7, v0
    v_mov_b32 v3, 1
    s_waitcnt vmcnt(0)
    s_mov_b64 exec, 0xff
    buffer_atomic_add v3, v2, s[8:11], s75 offen sc1
    s_mov_b64 exec, -1""")
    sr(A, 31, 216, 3)
    A("s_add_u32 s6, s6, 1\ns_cmp_lt_u32 s6, 16\ns_cbranch_scc1 LLOOP\ns_branch BG_END\nHASE:")
    A("s_mul_i32 s68, s76, 171\ns_lshr_b32 s68, s68, 10\ns_mul_i32 s69, s68, 6\ns_sub_u32 s69, s76, s69")
    A("s_cmp_ge_u32 s77, 96\ns_cbranch_scc1 NOWO\ns_and_b32 s74, s77, 7\ns_lshr_b32 s93, s77, 5"); st.woinit(A); A("NOWO:")
    def body(chunk):
        st.insrd(A, 12, 80, 18874368)
        A(f"s_mov_b32 s6, 0\ns_sub_u32 s7, s77, 96\ns_lshl_b32 s7, s7, 2\ns_add_u32 s7, s7, s21\ns_mul_i32 s7, s7, 49152"); wait(A, 6, 0, 8, 32)
        A(f"""s_mov_b32 s94, 0
        s_cmp_ge_u32 s77, 96
        s_cbranch_scc1 ILOOP
        v_lshlrev_b32 v2, 2, v0
        s_mov_b32 s79, 0
        AW:
        buffer_load_dword v3, v2, s[16:19], 0 offen offset:8 sc1
        s_add_u32 s79, s79, 1
        s_cmp_gt_u32 s79, 0x40000
        s_cbranch_scc1 BG_END
        s_waitcnt vmcnt(0)
        v_and_b32 v3, 0x200, v3
        v_cmp_ne_u32 vcc, 0, v3
        s_sleep 32
        s_and_b32 s5, vcc_lo, 0xffff
        s_cmp_lg_u32 s5, 0xffff
        s_cbranch_scc1 AW
        ILOOP:
        s_cmp_eq_u32 s6, 16
        s_cbranch_scc1 DOE
        s_cmp_lt_u32 s77, 96
        s_cbranch_scc1 DOC
        s_lshl_b32 m0, s21, 12
        v_lshlrev_b32 v1, 4, v0""")
        for i in range(3): A(f"buffer_load_dwordx4 v1, s[12:15], s7 offen offset:{i*1024} lds")
        A(f"""s_add_u32 s7, s7, 3072
        s_branch DOE
        DOC:
        s_lshl_b32 s5, s6, 2
        s_add_u32 s75, s5, 8
        s_bfe_u32 s22, s77, 0x20003
        s_add_u32 s22, s22, s5
        s_lshl_b32 s23, s74, 2
        s_add_u32 s23, s23, s21""")
        def wc():
            A(f"""s_lshl_b32 s5, s23, 7
            s_add_u32 s5, s5, {FL}
            v_and_b32 v4, 3, v0
            s_mov_b32 s79, 0
            WC:
            buffer_load_ubyte v5, v4, s[8:11], s5 offen sc1
            s_add_u32 s79, s79, 1
            s_cmp_gt_u32 s79, 0x40000
            s_cbranch_scc1 BG_END
            s_waitcnt vmcnt(0)
            v_cmp_ge_u32 vcc, s22, v5
            s_nop 1
            s_cbranch_vccz WC_ok
            s_sleep {SC}
            s_branch WC
            WC_ok:""")
            sr(A, 26, 31)
        st.stC(A, sf="sc1", wait=wc)
        A(f"s_lshl_b32 s75, s22, 7\ns_add_u32 s75, s75, {FL+4096}"); signal(A, 75, 1, True, W, 0); sr(A, 27, 31)
        A(f"DOE:\ns_cmp_lt_u32 s6, {SW}\ns_cselect_b32 s5, 2, 1\ns_add_u32 s5, s5, s94\ns_cmp_gt_u32 s5, s6\ns_cbranch_scc1 NOE\ns_lshl_b32 s5, s94, 3\ns_add_u32 s5, s5, s3\ns_lshl_b32 s5, s5, 7\ns_add_u32 s5, s5, {FL+12288}")
        chunk(lambda: (wait(A, 5, 0, 8, 32, W, 0, SE), sr(A, 23, 0)))
        A("s_add_u32 s94, s94, 1\ns_branch DOE\nNOE:\ns_add_u32 s6, s6, 1\ns_cmp_lt_u32 s6, 17\ns_cbranch_scc1 ILOOP"); stamp(A, 24, "s77", 251)
    st.stE(A, body); stamp(A, 25, "s77", 251)
    A("BG_END:")
def build2():
    A = Asm(); K = []; n = P + "_kernel"; chain.FLAGS = True
    A(f".globl {n}\n.p2align 8\n.type {n},@function\n{n}:\ns_cmp_ge_u32 s2, 256\ns_cbranch_scc1 K1E\ns_and_b32 s3, s2, 7\ns_cmp_lg_u32 s3, 0\ns_cbranch_scc1 BG")
    chain.gen_chain(A, None); A("s_waitcnt vmcnt(0)\nK1E:\ns_endpgm\nBG:"); bg(A); A("s_waitcnt vmcnt(0)\ns_endpgm")
    K.append((n, 256, 163840, 512, 256))
    n = "m2_kernel"
    A(f".globl {n}\n.p2align 8\n.type {n},@function\n{n}:\ns_cmp_ge_u32 s2, 192\ns_cbranch_scc1 K2E")
    st.pro(A); div6(A); l = st.stDF(A, True); A("s_waitcnt vmcnt(0)\nK2E:\ns_endpgm"); K.append((n, 192, l, 128, 128))
    return fin(A, K)
if __name__ == "__main__":
    open(sys.argv[1] if len(sys.argv) > 1 else f"cdna_kernels/{P}.s", "w").write(build2())
```

```python
from asmlib import *
PFD = 1
DS = 3
DA, DB, DN, MODE, KVF = 0, 0, 8, 0, ''
LM, LS, LO = 147456, 156672, 161792
def wreg(name, t):
    if name == "q0": return R("a", 8*t, 8)
    if name == "q1": return R("a", 72+8*t, 8)
    if name == "k0": return R("a", 144+8*t, 8)
    if name == "v0": return R("a", 216+8*t, 8) if t < 5 else R("v", 224+8*(t-5), 8)
def wsub(name, t, q):
    base = {"q0": ("a", 8*t), "q1": ("a", 72+8*t), "k0": ("a", 144+8*t),
            "v0": ("a", 216+8*t) if t < 5 else ("v", 224+8*(t-5)),
            "k1": ("v", 152+8*t), "v1": ("v", 80+8*t), "o0": ("v", 8+8*t), "o1": ("v", 152+8*t)}[name]
    return R(base[0], base[1]+2*q, 2)
def gen_chain(A, prof=False, flags=False):
    A(f"""
    s_lshr_b32 s20, s2, 3
    v_lshrrev_b32 v1, 6, v0
    v_and_b32 v0, 63, v0
    s_load_dwordx4 s[40:43], s[0:1], 16
    s_load_dwordx4 s[44:47], s[0:1], 32
    s_load_dwordx2 s[48:49], s[0:1], 8
    s_load_dwordx4 s[52:55], s[0:1], 104
    v_readfirstlane_b32 s21, v1
    s_getreg_b32 s24, hwreg(HW_REG_XCC_ID, 0, 4)
    s_waitcnt lgkmcnt(0)""")
    A.srd(8, 54, WSZ); A.srd(16, 52, 256)
    stamp(A, 18, "s2", 1)
    A(f"""
    v_lshrrev_b32 v1, 3, v0
    v_lshlrev_b32 v1, 13, v1
    v_bfe_u32 v2, v0, 1, 2
    v_bfe_u32 v3, v0, 4, 1
    v_xor_b32 v2, v2, v3
    v_lshlrev_b32 v2, 5, v2
    v_and_b32 v3, 1, v0
    v_lshlrev_b32 v3, 4, v3
    v_add3_u32 v1, v1, v2, v3
    v_xor_b32 v2, 64, v1
    v_lshlrev_b32 v3, 4, v0
    s_lshl_b32 s25, s21, 10
    s_lshl_b32 s26, s21, 16
    s_lshl_b32 s27, s20, 8
    s_add_u32 s26, s26, s27
    s_mul_i32 s27, s20, 147456
    s_add_u32 s27, s27, s25""")
    chunks = [("k1",42,1),("v1",44,1),("k0",42,0),("v0",44,0),("q0",40,0),("q1",40,1),("o0",46,0),("o1",46,1)]
    def issue(c):
        nm, b, j = chunks[c]
        A.srd(12, b, 4718592)
        for ii in range(18):
            A(f"s_add_u32 m0, s25, {(c&1)*73728 + ii*4096}")
            if nm[0] == "o":
                A(f"s_add_u32 s28, s27, {j*73728 + ii*4096}")
                A.m(f"buffer_load_dwordx4 v3, s[12:15], s28 offen lds", f"c{c}")
            else:
                A(f"s_add_u32 s28, s26, {ii*4*65536 + j*128}")
                A.m(f"buffer_load_dwordx4 v{1+(ii&1)}, s[12:15], s28 offen lds", f"c{c}")
    issue(0); issue(1)
    A(f"""
    v_mov_b32 v8, 0
    v_mov_b32 v9, 0
    v_mov_b32 v10, 0
    v_mov_b32 v11, 0
    v_lshrrev_b32 v4, 3, v0
    v_lshlrev_b32 v4, 12, v4
    v_and_b32 v5, 7, v0
    v_lshl_add_u32 v4, v5, 4, v4
    s_lshl_b32 s28, s20, 7
    s_add_u32 s28, s28, {HA}""")
    for i in range(9):
        A(f"s_add_u32 s29, s28, {i*32768}")
        A.m(f"buffer_store_dwordx4 v[8:11], v4, s[8:11], s29 offen sc1")
    A(f"s_mov_b32 s29, {HB}")
    for i in range(9):
        A.m(f"buffer_store_dwordx4 v[8:11], v3, s[8:11], s29 offen offset:{(i%4)*1024} sc1")
        if i % 4 == 3: A(f"s_add_u32 s29, s29, 4096")
    if FLAGS:
        A(f"s_and_b32 s29, s20, 15\ns_lshl_b32 s29, s29, 2\ns_add_u32 s29, s29, s21\ns_lshl_b32 s29, s29, 10\ns_add_u32 s29, s29, {FL}")
        for i in range(1): A.m(f"buffer_store_dwordx4 v[8:11], v3, s[8:11], s29 offen offset:{i*1024} sc1")
    A(f"""
    v_bfe_u32 v6, v0, 4, 1
    v_bfe_u32 v7, v0, 5, 1
    v_bfe_u32 v8, v0, 2, 2
    v_lshlrev_b32 v4, 5, v6
    v_lshl_add_u32 v4, v7, 3, v4
    v_add_u32 v4, v4, v8
    v_lshlrev_b32 v4, 7, v4
    v_lshrrev_b32 v9, 1, v8
    v_lshl_add_u32 v10, v6, 1, v9
    v_xor_b32 v10, s21, v10
    v_lshl_add_u32 v4, v10, 5, v4
    v_and_b32 v10, 3, v0
    v_lshl_add_u32 v4, v10, 3, v4
    v_lshlrev_b32 v5, 4, v7
    v_lshl_add_u32 v5, v6, 2, v5
    v_lshl_add_u32 v5, v9, 3, v5
    v_and_b32 v8, 1, v8
    v_add_u32 v5, v5, v8
    v_mul_u32_u24 v5, 1152, v5
    v_lshl_add_u32 v5, v10, 3, v5
    s_mul_i32 s28, s21, 288
    v_add_u32 v5, s28, v5""")
    for c in range(8):
        nm = chunks[c][0]
        if c == 0:
            A("s_waitcnt vmcnt(0)\ns_barrier")
            lb = A.lab("NOSIG")
            A(f"""s_cmp_lg_u32 s21, 0
            s_cbranch_scc1 {lb}
            s_lshl_b32 s28, 1, s24
            v_mov_b32 v6, s28
            v_mov_b32 v7, 0
            s_mov_b64 exec, 1
            buffer_atomic_or v6, v7, s[16:19], 0 offen offset:4 sc0
            s_waitcnt vmcnt(0)
            v_mov_b32 v6, 1
            buffer_atomic_add v6, v7, s[16:19], 0 offen
            s_waitcnt vmcnt(0)
            s_mov_b64 exec, -1
            {lb}:""")
        else:
            A.wm(f"c{c}"); A("s_barrier")
        if c == 7:
            A(f"s_mul_i32 s28, s21, 18432\nv_add_u32 v6, s28, v3")
            for t in range(18): A(f"ds_write_b128 v6, {R('v',152+4*t)} offset:{t*1024}")
            A("s_waitcnt lgkmcnt(0)")
        if nm[0] == "o":
            A(f"v_add_u32 v6, {(c&1)*73728}, v5")
            for q in range(4):
                A(f"ds_read_b64_tr_b16 {wsub(nm,8,q)}, v6 offset:{(32*(q>>1)+2*(q&1))*1152+32*8}")
            A(f"""v_bfe_u32 v7, v0, 5, 1
            v_mul_u32_u24 v7, {8*1152}, v7
            v_sub_u32 v6, v6, v7
            v_bfe_u32 v7, v0, 3, 1
            v_mul_u32_u24 v7, {8*1152-32}, v7
            v_sub_u32 v6, v6, v7""")
            for T in range(8):
                for q in range(4):
                    A(f"ds_read_b64_tr_b16 {wsub(nm,T,q)}, v6 offset:{(32*(T&1)+16*(q>>1)+2*(q&1))*1152+64*(T>>1)}")
        else:
            A(f"v_add_u32 v6, {(c&1)*73728}, v4\nv_add_u32 v7, {(c&1)*73728+32768}, v4")
            for t in range(9):
                for q in range(4):
                    o = (64*t+16*(q>>1)+4*(q&1))*128
                    A(f"ds_read_b64_tr_b16 {wsub(nm,t,q)}, v{6 if t<4 else 7} offset:{o if t<4 else o-32768}")
        A("s_waitcnt lgkmcnt(0)")
        if c < 6:
            A("s_barrier"); issue(c+2)
    A(f"s_barrier\ns_mul_i32 s28, s21, 18432\ns_add_u32 s28, s28, 73728\nv_add_u32 v6, s28, v3")
    for t in range(18): A(f"ds_write_b128 v6, {R('v',80+4*t)} offset:{t*1024}")
    A("s_waitcnt lgkmcnt(0)")
    for i in range(72): A(f"v_mov_b32 v{80+i}, v{8+i}")
    A.srd(12, 48, 9216)
    A(f"s_lshl_b32 s28, s21, 6\nv_add_u32 v6, s28, v0")
    for i in range(3):
        A(f"v_add_u32 v7, {i*256}, v6\nv_min_u32 v7, 575, v7\nv_lshlrev_b32 v8, 1, v7\nv_lshlrev_b32 v7, 4, v7\nv_add_u32 v7, {LM}, v7")
        for r in range(8):
            A(f"buffer_load_ushort v{20+r}, v8, s[12:15], 0 offen offset:{(r%3)*1152}")
            if r % 3 == 2: A("v_add_u32 v8, 3456, v8")
        A("s_waitcnt vmcnt(0)")
        for r in range(4): A(f"v_lshl_or_b32 v{12+r}, v{21+2*r}, 16, v{20+2*r}")
        A("ds_write_b128 v7, v[12:15]\ns_waitcnt lgkmcnt(0)")
    A(f"""
    v_mov_b32 v14, v0
    v_and_b32 v15, 15, v14
    v_lshrrev_b32 v16, 4, v14
    v_lshlrev_b32 v17, 4, v14
    v_add_u32 v0, {LS}, v17
    s_mul_i32 s28, s21, 18432
    v_add_u32 v1, s28, v17
    v_bfe_u32 v18, v14, 3, 1
    v_lshlrev_b32 v2, 2, v18
    v_bfe_u32 v18, v14, 2, 1
    v_add_u32 v2, v2, v18
    v_bfe_u32 v18, v14, 1, 1
    v_lshl_add_u32 v2, v18, 1, v2
    v_lshl_add_u32 v2, v16, 3, v2
    v_lshlrev_b32 v2, 4, v2
    v_and_b32 v18, 1, v14
    v_lshl_add_u32 v2, v18, 3, v2
    v_add_u32 v2, {LM}, v2
    s_mul_i32 s28, s21, 1280
    v_add_u32 v3, s28, v0
    v_and_b32 v4, 31, v14
    v_lshlrev_b32 v4, 3, v4
    v_add_u32 v4, {LS+1024}, v4
    v_add_u32 v5, s28, v4
    v_and_b32 v18, 1, v16
    v_lshrrev_b32 v19, 1, v16
    v_lshlrev_b32 v6, 4, v15
    v_lshl_add_u32 v6, v18, 3, v6
    v_lshl_add_u32 v6, v19, 7, v6
    s_lshl_b32 s28, s21, 8
    s_add_u32 s28, s28, {LO}
    v_add_u32 v6, s28, v6
    s_mul_i32 s29, s20, 3
    s_add_u32 s29, s29, s21
    s_lshl_b32 s30, s29, 7
    s_add_u32 s30, s30, {HB}
    s_sub_u32 s30, s30, s28
    s_lshl_b32 s31, s29, 12
    s_add_u32 s31, s31, {HA-LS}
    v_lshl_add_u32 v7, v18, 1, v19
    v_lshl_add_u32 v7, v7, 4, v15
    s_mul_i32 s28, s21, 144
    v_add_u32 v7, s28, v7
    s_add_u32 s28, s28, 128
    v_add_u32 v8, s28, v15
    v_lshrrev_b32 v20, 3, v7
    v_and_b32 v7, 7, v7
    v_lshlrev_b32 v7, 4, v7
    v_lshl_add_u32 v7, v20, 12, v7
    v_lshrrev_b32 v20, 3, v8
    v_and_b32 v8, 7, v8
    v_lshlrev_b32 v8, 4, v8
    v_lshl_add_u32 v8, v20, 12, v8
    v_lshl_add_u32 v8, v18, 3, v8
    v_lshl_add_u32 v8, v19, 2, v8
    s_lshl_b32 s32, s20, 7
    s_add_u32 s32, s32, {HA}
    s_add_u32 s33, s32, 32768
    s_mul_i32 s28, s21, 2304
    s_add_u32 s28, s28, {LM}
    v_add_u32 v9, s28, v17
    s_add_u32 s28, s28, 2048
    v_and_b32 v10, 31, v14
    v_lshl_add_u32 v10, v10, 3, s28
    s_mov_b32 s34, {HB-LM}
    s_mov_b32 s60, 0xff00ff00
    s_mov_b32 s61, 0xff00ff00
    s_mov_b32 s62, 0x00ff00ff
    s_mov_b32 s63, 0x00ff00ff
    s_mov_b32 s64, -1
    s_mov_b32 s65, 0
    v_mov_b32 v11, 0x4444
    v_mov_b32 v18, 0xeeee
    v_cndmask_b32 v11, v11, v18, s[60:61]
    v_and_b32 v18, 7, v15
    v_and_b32 v19, 1, v16
    v_lshlrev_b32 v19, 2, v19
    v_sub_u32 v18, v18, v19
    v_mov_b32 v12, 0
    v_mov_b32 v13, 0
    v_mov_b32 v20, 0x3f80
    v_mov_b32 v21, 0x3f800000
    v_cmp_eq_u32 vcc, 0, v18
    s_nop 1
    v_cndmask_b32 v12, v12, v20, vcc
    v_cmp_eq_u32 vcc, 1, v18
    s_nop 1
    v_cndmask_b32 v12, v12, v21, vcc
    v_cmp_eq_u32 vcc, 2, v18
    s_nop 1
    v_cndmask_b32 v13, v13, v20, vcc
    v_cmp_eq_u32 vcc, 3, v18
    s_nop 1
    v_cndmask_b32 v13, v13, v21, vcc
    v_and_b32 v18, 7, v15
    v_lshrrev_b32 v18, 1, v18
    v_cmp_eq_u32 s[66:67], 0, v18
    v_cmp_eq_u32 s[68:69], 1, v18
    v_cmp_eq_u32 s[70:71], 2, v18
    v_cmp_eq_u32 s[72:73], 3, v18
    s_mov_b32 s74, 0xaaaaaaaa
    s_mov_b32 s75, 0xaaaaaaaa
    s_lshl_b32 s35, s20, 13
    s_lshl_b32 s28, s21, 11
    s_add_u32 s36, s35, s28
    s_add_u32 s37, s36, {VF-LS}
    s_add_u32 s36, s36, {KF-LS}
    s_and_b32 s35, s20, 7
    s_lshl_b32 s35, s35, 2
    s_add_u32 s35, s35, s21
    s_lshl_b32 s35, s35, 13
    s_add_u32 s35, s35, {KF+PFD*262144-8*LS}
    s_mov_b32 m0, 163840
    s_lshl_b32 s38, s20, 12
    s_lshl_b32 s28, s21, 10
    s_add_u32 s38, s38, s28
    s_add_u32 s39, s38, {VM-LS}
    s_add_u32 s38, s38, {KM-LS}
    s_mov_b32 s76, {f2u(128**-0.5*1.4426950408889634)}
    s_mov_b32 s77, 0x3f803f80
    s_mov_b32 s22, 0
    s_mov_b32 s23, 1
    s_cmp_lt_u32 s20, 24
    s_cselect_b32 s78, 1, 0
    s_cmp_lt_u32 s21, 3
    s_cselect_b32 s78, s78, 0
    v_mov_b32 v20, 0
    s_mov_b32 s79, 0""")
    lw = A.lab("HS")
    A(f"""{lw}:
    buffer_load_dwordx2 v[18:19], v20, s[16:19], 0 offen sc1
    s_add_u32 s79, s79, 1
    s_cmp_gt_u32 s79, 0x100000
    s_cbranch_scc1 CH_END
    s_waitcnt vmcnt(0)
    v_readfirstlane_b32 s28, v18
    v_readfirstlane_b32 s29, v19
    s_cmp_lt_u32 s28, 32
    s_cbranch_scc1 {lw}
    s_bcnt1_i32_b32 s29, s29""")
    if FLAGS:
        A(f"s_lshl_b32 s81, s20, 7\ns_add_u32 s81, s81, s21\ns_add_u32 s81, s81, {FL}\ns_mov_b32 s80, 0"); stamp(A, 19, "s2", 18); rdy(A, 18); stamp(A, 20, "s2", 18)
    A(f"""s_cmp_eq_u32 s29, 1
    s_cbranch_scc0 CH_SLOW""")
    if prof is not None: A("s_memrealtime s[94:95]")
    loop(A, "F", "", prof)
    A("CH_SLOW:")
    loop(A, "S", "sc1", False)
    A("CH_END:")
    if FLAGS: A("s_waitcnt vmcnt(0)\nv_mov_b32 v14, s22\nv_add_u32 v14, 1, v14\nbuffer_store_byte v14, off, s[8:11], s81 sc1")
    stamp(A, 21, "s2", 14)

FLAGS = False
def rdy(A, v):
    l = A.lab("RDY")
    A(f"""s_mov_b32 s79, 0
    {l}:
    s_add_u32 s28, s22, {PFD}
    s_cmp_lt_u32 s28, s80
    s_cbranch_scc1 {l}_ok
    v_mbcnt_lo_u32_b32 v{v}, -1, 0
    v_lshlrev_b32 v{v}, 2, v{v}
    buffer_load_dword v{v}, v{v}, s[16:19], 0 offen offset:8 sc1
    s_add_u32 s79, s79, 1
    s_cmp_gt_u32 s79, 0x100000
    s_cbranch_scc1 CH_END
    s_waitcnt vmcnt(0)
    v_and_b32 v{v}, 0x200, v{v}
    v_cmp_ne_u32 vcc, 0, v{v}
    s_nop 1
    s_and_b32 s28, vcc_lo, 0xffff
    s_ff0_i32_b32 s28, s28
    s_lshl_b32 s80, s28, 2
    s_cmp_eq_u32 s28, 16
    s_cselect_b32 s80, 0x3e8, s80
    s_cmp_lg_u32 s80, 0
    s_cbranch_scc1 {l}
    s_sleep 24
    s_branch {l}
    {l}_ok:""")
def loop(A, X, stf, prof):
    SM = "v_smfmac_f32_16x16x64_bf16"
    M32 = "v_mfma_f32_16x16x32_bf16"; M16 = "v_mfma_f32_16x16x16_bf16"
    DPP = "row_ror:8 row_mask:0xf bank_mask:0xf"
    def stamp_(i):
        if prof: A(f"s_memtime s[{80+2*i}:{81+2*i}]")
    def ldA(t, slot, tag):
        A.d(f"ds_read_b64_tr_b16 v[{slot}:{slot+1}], v2 offset:{t*1024}", tag)
        A.d(f"ds_read_b64_tr_b16 v[{slot+2}:{slot+3}], v2 offset:{t*1024+512}", tag)
    def ldW(t, b, tag):
        A.d(f"ds_read_b128 {R('v',22+8*b)}, v1 offset:{t*2048}", tag)
        A.d(f"ds_read_b128 {R('v',26+8*b)}, v1 offset:{t*2048+1024}", tag)
    def pre():
        for i in range(50, 74): A(f"v_mov_b32 v{i}, 0")
        ldW(0, 0, "k0"); ldW(1, 1, "k1")
    pre()
    A.m(f"buffer_load_dwordx4 v[14:17], v0, s[8:11], s36 offen sc1", "kx")
    A.m(f"buffer_load_dwordx4 v[18:21], v0, s[8:11], s36 offen offset:1024 sc1", "kx")
    A(f"s_waitcnt lgkmcnt(0)\nSTEP{X}:\ns_barrier")
    stamp_(0)
    A.ds = []; A.vm = ["kx"]
    for t in range(3): ldA(t, 38+4*t, f"a{t}")
    for t in range(9):
        sl = R("v", 38+4*(t%3)); u = t-1
        A.wd(f"a{t}")
        A(f"{SM} v[50:53], {sl}, {wreg('q0',t)}, v11")
        if 1 <= t <= 7: ldW(t+1, u&1, f"k{t+1}")
        if t == 8: ldW(0, 1, "p0")
        A(f"{SM} v[54:57], {sl}, {wreg('q1',t)}, v11")
        if 1 <= t <= 6: ldA(t+2, 38+4*(u%3), f"a{t+2}")
        if t >= 7: ldA(t-7, 38+4*(u%3), f"p{t-7}")
        A(f"{SM} v[58:61], {sl}, {wreg('k0',t)}, v11")
        if t == 7: A("v_add_u32 v1, 73728, v1")
        if t == 3: A("s_waitcnt vmcnt(2)")
        if t >= 2: A.wd(f"k{t}")
        A(f"{SM} v[62:65], {sl}, {R('v',22+8*(t&1),8)}, v11")
        if 3 <= t <= 6: A(f"v_mov_b32 v{66+2*(t-3)}, 0\nv_mov_b32 v{67+2*(t-3)}, 0")
    ldW(1, 0, "p1")
    stamp_(1)
    def pair(t):
        sl = R("v", 38+4*(t&1))
        A.wd(f"p{t}")
        A(f"{SM} v[66:69], {sl}, {wreg('v0',t)}, v11")
        A(f"{SM} v[70:73], {sl}, {R('v',22+8*((t+1)&1),8)}, v11")
    def pld(t):
        if t < 9:
            ldA(t, 38+4*(t&1), f"p{t}"); ldW(t, (t+1)&1, f"p{t}")
        if t == 8: A("v_subrev_u32 v1, 73728, v1")
    pair(0); pld(2); A.nop(2)
    pk = [74, 76, 78, 46]
    for i in range(4):
        A(f"v_cvt_pk_bf16_f32 v{pk[i]}, v{50+4*i}, v{51+4*i}\nv_cvt_pk_bf16_f32 v{pk[i]+1}, v{52+4*i}, v{53+4*i}")
    for i in range(4):
        A(f"{M16} {R('v',50+4*i)}, {R('v',pk[i],2)}, v[12:13], 0")
    pair(1); pld(3); A.nop(1)
    pk = [74, 76, 46, 48]
    for i in range(4):
        A(f"v_cvt_pk_bf16_f32 v{pk[i]}, v{50+4*i}, v{51+4*i}\nv_cvt_pk_bf16_f32 v{pk[i]+1}, v{52+4*i}, v{53+4*i}")
    A.wm("kx")
    A(f"{M32} v[54:57], v[14:17], v[74:77], 0")
    A(f"{M32} v[58:61], v[18:21], v[74:77], 0")
    A(f"{M32} v[50:53], v[46:49], v[74:77], 0")
    A.m(f"buffer_load_dwordx4 v[14:17], v0, s[8:11], s37 offen sc1", "vx")
    A.m(f"buffer_load_dwordx4 v[18:21], v0, s[8:11], s37 offen offset:1024 sc1", "vx")
    pair(2); pld(4)
    for r in range(4): A(f"v_cndmask_b32 v{62+r}, v{54+r}, v{58+r}, s[60:61]")
    for r in range(2): A(f"v_cndmask_b32 v{78+r}, v{50+r}, v{52+r}, s[60:61]")
    A.d("ds_write_b128 v3, v[62:65]", "sw"); A.d("ds_write_b64 v5, v[78:79]", "sw")
    A.m(f"buffer_store_dwordx4 v[46:49], v0, s[8:11], s38 offen {KVF}")
    if FLAGS: A("v_mov_b32 v54, s22"); A.m("buffer_store_byte v54, off, s[8:11], s81 sc1")
    pair(3); A.wd("sw"); A("s_barrier")
    stamp_(2)
    mr = [74, 76, 78, 46]
    for i in range(4):
        A.d(f"ds_read_b128 {R('v',50+4*i)}, v0 offset:{i*1280}", f"s{i}")
        A.d(f"ds_read_b64 {R('v',mr[i],2)}, v4 offset:{i*1280}", f"s{i}")
    pld(5); pair(4); pld(6)
    A.wd("s1")
    for r in range(4): A(f"v_add_f32 v{50+r}, v{50+r}, v{54+r}")
    for r in range(2): A(f"v_add_f32 v{74+r}, v{74+r}, v{76+r}")
    A.wd("s3")
    for r in range(4): A(f"v_add_f32 v{58+r}, v{58+r}, v{62+r}")
    for r in range(2): A(f"v_add_f32 v{78+r}, v{78+r}, v{46+r}")
    for r in range(4): A(f"v_add_f32 v{50+r}, v{50+r}, v{58+r}")
    for r in range(2): A(f"v_add_f32 v{74+r}, v{74+r}, v{78+r}")
    A("v_max3_f32 v54, v50, v51, v52\nv_max3_f32 v54, v54, v53, v74\nv_max_f32 v54, v54, v75")
    pair(5)
    A(f"v_max_f32_dpp v54, v54, v54 {DPP}\nv_mov_b32 v55, v54")
    pld(7)
    A("v_permlane16_swap_b32 v54, v55\nv_max_f32 v54, v54, v55\nv_mov_b32 v55, v54")
    pair(6)
    A("v_permlane32_swap_b32 v54, v55\nv_max_f32 v54, v54, v55\nv_mul_f32 v54, s76, v54")
    pld(8)
    for r in (50, 51, 52, 53, 74, 75): A(f"v_fma_f32 v{r}, v{r}, s76, -v54")
    pair(7)
    for r in (50, 51, 52, 53, 74, 75): A(f"v_exp_f32 v{r}, v{r}")
    pair(8)
    A("v_cvt_pk_bf16_f32 v54, v50, v51\nv_cvt_pk_bf16_f32 v55, v52, v53\nv_cvt_pk_bf16_f32 v58, v74, v75")
    for r in range(4): A(f"v_mov_b32 v{60+r}, s77")
    A(f"v_mov_b32_dpp v56, v54 {DPP}\nv_mov_b32_dpp v57, v55 {DPP}\nv_mov_b32_dpp v59, v58 {DPP}")
    A("v_cndmask_b32 v64, 0, v60, s[64:65]\nv_cndmask_b32 v65, 0, v60, s[64:65]")
    A.wm("vx")
    A(f"{M32} v[30:33], v[60:63], v[54:57], 0")
    A("v_cvt_pk_bf16_f32 v76, v66, v67\nv_cvt_pk_bf16_f32 v77, v68, v69")
    A(f"{M32} v[22:25], v[14:17], v[54:57], 0")
    A("v_cvt_pk_bf16_f32 v78, v70, v71\nv_cvt_pk_bf16_f32 v79, v72, v73")
    A(f"{M32} v[26:29], v[18:21], v[54:57], 0")
    A(f"{M16} v[30:33], v[64:65], v[58:59], v[30:33]")
    A(f"{M16} v[22:25], v[76:77], v[58:59], v[22:25]")
    A(f"{M16} v[26:29], v[78:79], v[58:59], v[26:29]")
    A.m(f"buffer_store_dwordx4 v[76:79], v0, s[8:11], s39 offen {KVF}")
    A(f"""s_cmp_eq_u32 s22, 63
    s_cbranch_scc1 CH_END
    v_lshrrev_b32 v67, 1, v0
    v_and_b32 v67, 0x180, v67
    v_and_b32 v66, 0xfffffc7f, v0
    v_or_b32 v67, v66, v67
    v_rcp_f32 v30, v30
    s_mov_b64 exec, s[62:63]""")
    for r in range(8): A(f"v_mul_f32 v{22+r}, v{22+r}, v30")
    for r in range(4): A(f"v_cvt_pk_bf16_f32 v{34+r}, v{22+2*r}, v{23+2*r}")
    A.d("ds_write_b64 v6, v[34:35]"); A.d("ds_write_b64 v6, v[36:37] offset:1024", "ow")
    A("s_mov_b64 exec, -1")
    for i in range(38, 48): A(f"v_mov_b32 v{i}, 0")
    A.wd("ow"); A("s_barrier")
    stamp_(3)
    A.d("ds_read_b128 v[30:33], v0 offset:5120", "o4"); A.d("ds_read_b128 v[34:37], v0 offset:6144", "o5")
    for k in range(4): A.d(f"ds_read_b128 {R('v',14+4*k)}, v67 offset:{5120+512*k}", f"o{k}")
    for i in range(48, 58): A(f"v_mov_b32 v{i}, 0")
    def wo(p, k): A(f"{SM} {R('v',38+4*p)}, {R('v',14+4*k)}, {R('v',80+72*(k>>1)+16*p+8*(k&1),8)}, v11")
    def quad(b, o):
        out = [f"v_cvt_pk_bf16_f32 v{o+r}, v{b+2*r}, v{b+2*r+1}" for r in range(4)]
        out += [f"v_and_or_b32 v{o+r}, v{o+r}, -2, s23" for r in range(4)]
        return out + ["s_nop 0", f"v_permlane16_swap_b32 v{o}, v{o+2}", f"v_permlane16_swap_b32 v{o+1}, v{o+3}"]
    t8 = ["s_nop 0", "s_nop 0", "s_nop 0"] + """v_permlane32_swap_b32 v54, v56
    v_permlane32_swap_b32 v55, v57
    v_add_f32 v54, v54, v56
    v_add_f32 v55, v55, v57
    v_cvt_pk_bf16_f32 v66, v54, v55
    v_and_or_b32 v66, v66, -2, s23""".split("\n") + [f"buffer_store_dword v66, v8, s[8:11], s32 offen {stf}"]
    A("s_nop 0")
    for t in range(2):
        A.wd(f"o{4+t}"); A(f"{SM} v[54:57], {R('v',30+4*t)}, {R('v',80+72*t+64,8)}, v11")
    for k in range(4):
        A.wd(f"o{k}"); wo(0, k); A(t8.pop(0))
        if k >= 2: A(t8.pop(0))
        wo(1, k); A(t8.pop(0))
    assert not t8
    q0 = ["s_nop 2", "s_nop 2"] + quad(38, 58) + [f"buffer_store_dwordx4 v[58:61], v7, s[8:11], s32 offen {stf}"]
    for k in range(4):
        for p in (2, 3):
            wo(p, k)
            for _ in range(2 if k else 1):
                if q0: A(q0.pop(0))
    assert not q0
    A.nop(5)
    for l in quad(46, 62): A(l)
    A(f"buffer_store_dwordx4 v[62:65], v7, s[8:11], s33 offen {stf}")
    stamp_(4)
    A(f"""s_add_u32 s36, s36, {0 if MODE == 3 else 262144}
    s_add_u32 s37, s37, {0 if MODE == 3 else 262144}
    s_add_u32 s38, s38, {0 if MODE == 2 else 131072}
    s_add_u32 s39, s39, {0 if MODE == 2 else 131072}
    s_add_u32 s22, s22, 1
    s_add_u32 s35, s35, {0 if MODE == 3 else 262144}
    s_mov_b32 s79, 0
    s_cmp_eq_u32 s78, 0
    s_cbranch_scc1 NORED{X}
    v_mov_b32 v34, 0x3f80
    v_mov_b32 v35, 0x3f800000
    v_cndmask_b32 v34, v34, v35, s[74:75]
    v_cndmask_b32 v30, 0, v34, s[66:67]
    v_cndmask_b32 v31, 0, v34, s[68:69]
    v_cndmask_b32 v32, 0, v34, s[70:71]
    v_cndmask_b32 v33, 0, v34, s[72:73]""")
    TO = f"s_add_u32 s79, s79, 1\ns_cmp_gt_u32 s79, 0x100000\ns_cbranch_scc1 CH_END"
    def issA(b):
        for i in range(4): A(f"buffer_load_dwordx4 {R('v',b+4*i)}, v0, s[8:11], s31 offen offset:{i*1024} sc1")
    def chkA(b):
        for i in range(4):
            A(f"s_waitcnt vmcnt({7-i})")
            A(f"{M32} v[34:37], v[30:33], {R('v',b+4*i)}, {'0' if i==0 else 'v[34:37]'}")
            for r in range(4):
                A(f"v_xor_b32 v14, s23, v{b}" if i+r == 0 else f"v_bitop3_b32 v14, v14, v{b+4*i+r}, s23 bitop3:0xf6")
        A(f"v_and_b32 v14, 1, v14\nv_cmp_ne_u32 vcc, 0, v14\ns_nop 0\ns_cbranch_vccz GOTA{X}")
    if DA: A(f"s_sleep {DA}")
    issA(38); A(f"s_sleep {DS}"); issA(54)
    A(f"POLLA{X}:")
    chkA(38); issA(38); chkA(54); issA(54); A(TO); A(f"s_branch POLLA{X}\nGOTA{X}:")
    for r in range(4): A(f"v_add_f32_dpp v{76+r}, v{34+r}, v{34+r} {DPP}")
    A(f"""v_cvt_pk_bf16_f32 v79, v78, v79
    v_cvt_pk_bf16_f32 v78, v76, v77
    v_and_or_b32 v78, v78, -2, s23
    s_mov_b64 exec, 0x00ff00ff
    buffer_store_dwordx2 v[78:79], v6, s[8:11], s30 offen {stf}
    s_mov_b64 exec, -1
    s_branch RED{X}
    NORED{X}:
    s_cmp_lt_u32 s20, 24
    s_cbranch_scc1 NOPF{X}""")
    if FLAGS: rdy(A, 38)
    A(f"""    v_lshlrev_b32 v38, 3, v0
    s_add_u32 s28, s35, {VF-KF}
    buffer_load_dword v38, s[8:11], s35 offen sc1 lds
    buffer_load_dword v38, s[8:11], s28 offen sc1 lds
    NOPF{X}:
    s_sleep {DN}
    RED{X}:""")
    stamp_(5)
    ldW(0, 0, "k0"); ldW(1, 1, "k1")
    if DB: A(f"s_sleep {DB}")
    def issB(b, c):
        A(f"""buffer_load_dwordx4 {R('v',b)}, v9, s[8:11], s34 offen sc1
        buffer_load_dwordx4 {R('v',b+4)}, v9, s[8:11], s34 offen offset:1024 sc1
        buffer_load_dwordx2 {R('v',c,2)}, v10, s[8:11], s34 offen sc1""")
    def chkB(b, c, lab):
        A(f"s_waitcnt vmcnt(3)\nv_xor_b32 v38, s23, v{b}")
        for r in (b+2, b+4, b+6, c): A(f"v_bitop3_b32 v38, v38, v{r}, s23 bitop3:0xf6")
        A(f"v_and_b32 v38, 1, v38\nv_cmp_ne_u32 vcc, 0, v38\ns_nop 0\ns_cbranch_vccz {lab}")
    def wrB(b, c):
        A(f"ds_write_b128 v9, {R('v',b)}\nds_write_b128 v9, {R('v',b+4)} offset:1024\nds_write_b64 v10, {R('v',c,2)}")
    issB(14, 74)
    A("s_waitcnt vmcnt(3)\ns_mov_b32 s79, 0")
    for i in range(50, 66): A(f"v_mov_b32 v{i}, 0")
    if DS > 1: A(f"s_sleep {DS-1}")
    issB(66, 76)
    A(f"POLLB{X}:")
    chkB(14, 74, f"GOTB1{X}"); issB(14, 74); chkB(66, 76, f"GOTB2{X}"); issB(66, 76); A(TO); A(f"s_branch POLLB{X}\nGOTB1{X}:")
    wrB(14, 74); A(f"s_branch GOTB{X}\nGOTB2{X}:"); wrB(66, 76)
    A(f"""GOTB{X}:
    s_xor_b32 s23, s23, 1
    s_waitcnt lgkmcnt(0)
    buffer_load_dwordx4 v[14:17], v0, s[8:11], s36 offen sc1
    buffer_load_dwordx4 v[18:21], v0, s[8:11], s36 offen offset:1024 sc1""")
    if prof:
        stamp_(6)
        lb = A.lab("NP")
        A(f"s_waitcnt lgkmcnt(0)\ns_cmp_lg_u32 s22, 40\ns_cbranch_scc1 {lb}")
        for i in range(7): A(f"v_mov_b32 v{38+i}, s{80+2*i}")
        A(f"""s_lshl_b32 s28, s20, 2
        s_add_u32 s28, s28, s21
        s_lshl_b32 s28, s28, 5
        s_add_u32 s28, s28, {TS}
        v_mov_b32 v46, 0
        buffer_store_dwordx4 v[38:41], v46, s[8:11], s28 offen
        buffer_store_dwordx4 v[42:45], v46, s[8:11], s28 offen offset:16
        s_waitcnt vmcnt(0)
        {lb}:""")
    A(f"s_branch STEP{X}")
```

```python
from asmlib import *
from gemm import *
M16 = "v_mfma_f32_16x16x16_bf16"
def pro(A):
    A("""v_lshrrev_b32 v1, 6, v0
    v_and_b32 v0, 63, v0
    s_load_dwordx4 s[52:55], s[0:1], 104
    v_readfirstlane_b32 s21, v1
    s_waitcnt lgkmcnt(0)""")
    A.srd(8, 54, WSZ); A.srd(16, 52, 256)
def insrd(A, r, koff, size):
    A(f"s_load_dwordx2 s[{r}:{r+1}], s[0:1], {koff}\ns_mov_b32 s{r+2}, {size}\ns_mov_b32 s{r+3}, 0x00020000")
def rsum(A, v, t):
    for k in (8, 4, 2, 1):
        A(f"s_nop 1\nv_add_f32_dpp v{v}, v{v}, v{v} row_ror:{k} row_mask:0xf bank_mask:0xf")
PP = 0x8000000; PST = 2048*2304
def ln(A, second, sf="", lf="", part=None):
    A("s_lshl_b32 s44, s20, 2" if part else "s_lshl_b32 s44, s20, 4\ns_lshl_b32 s45, s21, 2\ns_add_u32 s44, s44, s45")
    A(f"""v_lshrrev_b32 v1, 4, v0
    v_add_u32 v2, s44, v1
    v_mul_u32_u24 v2, 1152, v2
    v_and_b32 v3, 15, v0
    v_lshl_add_u32 v2, v3, 3, v2""")
    if second: A(f"s_mov_b32 s44, {HH}\ns_mov_b32 s45, {HN}"); src = "s[8:11], s44"
    else:
        insrd(A, 12, 0, 2359296); src = "s[12:15], 0"
        lin(A, 3, 0, [(3, 1, 1024), (2, 1, 8), (0, 2, 256), (4, 2, 16)], 4)
        A(f"s_mul_i32 s44, s20, 18432\ns_lshl_b32 s45, s21, 6\ns_add_u32 s45, s45, s44\ns_add_u32 s45, s45, {XN}\ns_waitcnt lgkmcnt(0)")
    if part:
        insrd(A, 12, 0, 2359296); src = "s[12:15], 0"
        A(f"v_lshlrev_b32 v3, 1, v2\ns_mov_b32 s46, {PP}\ns_waitcnt lgkmcnt(0)")
    for i in range(9): A(f"buffer_load_dwordx2 v[{10+2*i}:{11+2*i}], v2, {src} offen offset:{128*i} {lf}")
    if part:
        def pl(k):
            for i in range(9): A(f"buffer_load_dwordx4 {R('v',66+36*(k%5)+4*i)}, v3, s[8:11], s46 offen offset:{256*i} sc1")
            A(f"s_add_u32 s46, s46, {PST}")
        part(); [pl(k) for k in range(5)]
        for k in range(18): A(f"v_lshlrev_b32 v{30+2*k}, 16, v{10+k}\nv_and_b32 v{31+2*k}, 0xffff0000, v{10+k}")
        for k in range(8):
            A(f"s_waitcnt vmcnt({9*min(4, 7-k)})")
            for i in range(18): A(f"v_pk_add_f32 {R('v',30+2*i,2)}, {R('v',30+2*i,2)}, {R('v',66+36*(k%5)+2*i,2)}")
            if k < 3: pl(k+5)
        for k in range(18): A(f"v_cvt_pk_bf16_f32 v{10+k}, v{30+2*k}, v{31+2*k}")
        for i in range(9): A(f"buffer_store_dwordx2 v[{10+2*i}:{11+2*i}], v2, s[8:11], s44 offen offset:{128*i} sc1")
    A(f"s_mov_b32 s46, {f2u(1/576)}\ns_mov_b32 s47, {f2u(1e-5)}")
    for p in range(2 if second else 1):
        for k in range(18):
            if p == 0 and k % 2 == 0 and not part: A(f"s_waitcnt vmcnt({8-k//2})")
            A(f"v_lshlrev_b32 v{30+2*k}, 16, v{10+k}\nv_and_b32 v{31+2*k}, 0xffff0000, v{10+k}")
            if k: A(f"v_pk_add_f32 v[4:5], v[{'4:5' if k > 1 else '30:31'}], v[{30+2*k}:{31+2*k}]")
        A("v_add_f32 v4, v4, v5"); rsum(A, 4, 5)
        A("v_mul_f32 v4, s46, v4\nv_mov_b32 v6, 0\nv_mov_b32 v7, 0\nv_mov_b32 v5, v4")
        for k in range(18):
            r = f"v[{30+2*k}:{31+2*k}]"
            A(f"v_pk_add_f32 {r}, {r}, v[4:5] neg_lo:[0,1] neg_hi:[0,1]\nv_pk_fma_f32 v[6:7], {r}, {r}, v[6:7]")
        A("v_add_f32 v6, v6, v7"); rsum(A, 6, 7)
        A("v_mov_b32 v7, s47\nv_fma_f32 v6, v6, s46, v7\nv_rsq_f32 v6, v6\ns_nop 0\nv_mov_b32 v7, v6")
        for k in range(18):
            r = f"v[{30+2*k}:{31+2*k}]"
            A(f"v_pk_mul_f32 {r}, {r}, v[6:7]\nv_cvt_pk_bf16_f32 v{10+k}, v{30+2*k}, v{31+2*k}")
    for i in range(9):
        if second: A(f"buffer_store_dwordx2 v[{10+2*i}:{11+2*i}], v2, s[8:11], s45 offen offset:{128*i} {sf}")
        else:
            A(f"buffer_store_dwordx2 v[{10+2*i}:{11+2*i}], v3, s[8:11], s45 offen offset:{2048*(i&1)} {sf}")
            if i & 1: A("s_add_u32 s45, s45, 4096")
class StA:
    def __init__(s, A, lf=""):
        s.A = A
        s.x = Op('fr', 8, 40, 18432, 8, list(range(8)), None, lf)
        s.w = [Op('tr', r, 41+i, 8192, 8, [0, 4], 21) for i, r in enumerate((12, 24, 28))]
        s.g = Gemm(A, [s.x]+s.w, 2, 2, 0, 21, 44)
    def setup(s):
        for i, r in enumerate((12, 24, 28)): insrd(s.A, r, 16+8*i, 4718592)
        s.g.setup_load(); s.g.setup_comp(); s.A("v_lshlrev_b32 v1, 4, v0\ns_waitcnt lgkmcnt(0)")
    def item(s, sf="", wait=None):
        A, g = s.A, s.g
        A(f"s_lshr_b32 s22, s20, 5\ns_and_b32 s23, s20, 31\ns_mul_i32 s40, s22, {8*18432}\ns_add_u32 s40, s40, {XN}\ns_lshl_b32 s41, s23, 8\ns_mov_b32 s42, s41\ns_mov_b32 s43, s41")
        for i in range(192): A(f"v_accvgpr_write_b32 a{i}, 0")
        acc = lambda op, t, j: ((op*8+t)*2+j)*4
        def mf(ks):
            o = []
            for op in range(3):
                for j in range(2):
                    for t in range(8):
                        a, b = R('v', g.frag(s.w[op], j, ks)), R('v', g.frag(s.x, t, ks))
                        if op == 2: a, b = b, a
                        c = R('a', acc(op, t, j)); o.append(f"{M32} {c}, {a}, {b}, {c}")
            return o
        g.run(9, mf, "both", 46, wait)
        A(f"s_lshl_b32 s22, s22, 20\ns_lshl_b32 s23, s23, 13\ns_add_u32 s22, s22, s23\ns_lshl_b32 s23, s21, 11\ns_add_u32 s22, s22, s23\ns_nop 7")
        n = 0
        for op, base in ((1, KF), (2, VF), (0, QF)):
            for sg in range(4):
                A(f"s_add_u32 s44, s22, {base + sg*262144}")
                for u in range(2):
                    p = (acc(op, 2*sg+u, 0), acc(op, 2*sg+u, 1)) if op < 2 else (acc(op, 2*sg, u), acc(op, 2*sg+1, u))
                    t = g.fb + 12*(n % 8); n += 1
                    for i in range(8): A(f"v_accvgpr_read_b32 v{t+i}, a{p[i>>2]+(i&3)}")
                    for i in range(4): A(f"v_cvt_pk_bf16_f32 v{t+8+i}, v{t+2*i}, v{t+2*i+1}")
                    A(f"buffer_store_dwordx4 {R('v',t+8)}, v1, s[8:11], s44 offen offset:{u*1024} {sf}")
def xred(A, op, a, b):
    for pl in ("v_permlane16_swap_b32", "v_permlane32_swap_b32"):
        for x, y in zip(a, b): A(f"v_mov_b32 v{y}, v{x}")
        A("s_nop 1")
        for x, y in zip(a, b): A(f"{pl} v{x}, v{y}")
        for x, y in zip(a, b): A(f"{op} v{x}, v{x}, v{y}")
def stC(A, lf="", mf="", sf="", wait=None):
    A(f"""v_lshlrev_b32 v1, 4, v0
    s_lshl_b32 s44, s22, 17
    s_lshl_b32 s45, s23, 12
    s_add_u32 s44, s44, s45
    s_lshl_b32 s45, s44, 1""")
    def ld(reg, n, base, sr, fl):
        for i in range(n):
            if i % 4 == 0: A(f"s_add_u32 s46, s{sr}, {base + i*1024}")
            A.m(f"buffer_load_dwordx4 {R('v', reg+4*i)}, v1, s[8:11], s46 offen offset:{(i%4)*1024} {fl}", reg)
    A.vm = []
    ld(8, 8, QF, 45, lf); ld(40, 8, KF, 45, lf); ld(88, 8, VF, 45, lf)
    A("v_and_b32 v2, 15, v0\nv_lshrrev_b32 v3, 4, v0\nv_lshlrev_b32 v3, 2, v3\nv_sub_u32 v2, v2, v3")
    for r in range(4): A(f"v_cmp_le_i32_e64 s[{60+2*r}:{61+2*r}], {r}, v2")
    A(f"v_mov_b32 v3, {f2u(-1e30)}\ns_mov_b32 s47, {f2u(128**-0.5*1.4426950408889634)}")
    S = {("m",0):136, ("m",1):140, (0,0):144, (0,1):148, (1,1):152}
    for tags, keys in (((40,), [(0,0),(0,1),(1,1)]), ((72,), [("m",0),("m",1)])):
        if tags == (72,): wait(); A.vm = []; ld(72, 4, KM, 44, mf); ld(120, 4, VM, 44, mf)
        A.wm(*tags)
        for w in range(4):
            for k, q in keys:
                a = 72+4*w if k == "m" else 40+4*(2*w+k); c = R('v', S[k,q])
                A(f"{M32} {c}, {R('v',a)}, {R('v',8+4*(2*w+q))}, {c if w else 0}")
    A.nop(8)
    for r in range(4): A(f"v_cndmask_b32_e64 v{144+r}, v3, v{144+r}, s[{60+2*r}:{61+2*r}]\nv_cndmask_b32_e64 v{152+r}, v3, v{152+r}, s[{60+2*r}:{61+2*r}]")
    T = {0: [136+i for i in range(4)]+[144+i for i in range(4)], 1: [140+i for i in range(4)]+[148+i for i in range(8)]}
    for q in (0, 1):
        t = T[q]; A(f"v_max_f32 v{4+q}, v{t[0]}, v{t[1]}")
        for i in range(2, len(t), 2): A(f"v_max3_f32 v{4+q}, v{t[i]}, v{t[i+1]}, v{4+q}")
    xred(A, "v_max_f32", [4, 5], [6, 7])
    A("v_mul_f32 v4, s47, v4\nv_mul_f32 v5, s47, v5")
    for q in (0, 1):
        for x in T[q]: A(f"v_fma_f32 v{x}, v{x}, s47, -v{4+q}")
        for x in T[q]: A(f"v_exp_f32 v{x}, v{x}")
    for q in (0, 1):
        t = T[q]; A(f"v_add_f32 v{4+q}, v{t[0]}, v{t[1]}\nv_add_f32 v6, v{t[2]}, v{t[3]}\nv_add_f32 v{4+q}, v{4+q}, v6\nv_mul_f32 v{4+q}, 0.5, v{4+q}")
        for x in t[4:]: A(f"v_add_f32 v{4+q}, v{4+q}, v{x}")
    xred(A, "v_add_f32", [4, 5], [6, 7])
    A("v_rcp_f32 v4, v4\nv_rcp_f32 v5, v5\nv_mov_b32 v162, 0\nv_mov_b32 v163, 0")
    for q in (0, 1):
        t = T[q]
        for x in t: A(f"v_mul_f32 v{x}, v{4+q}, v{x}")
        d = [156+2*q, 157+2*q] + [160+4*q+i for i in range(4)]
        for i in range(len(t)//2): A(f"v_cvt_pk_bf16_f32 v{d[i]}, v{t[2*i]}, v{t[2*i+1]}")
    A("s_waitcnt vmcnt(0)\ns_nop 0")
    for et in range(8):
        for q in (0, 1): A(f"{M16} {R('v',8+4*(2*et+q))}, {R('v',120+4*(et&3)+2*(et>>2),2)}, {R('v',156+2*q,2)}, 0")
    for et in range(8):
        for q in (0, 1): c = R('v',8+4*(2*et+q)); A(f"{M32} {c}, {R('v',88+4*(2*(et&3)+(et>>2)))}, {R('v',160+4*q)}, {c}")
    A(f"""s_lshl_b32 s44, s21, 12
    v_add_u32 v2, s44, v1
    s_mul_i32 s44, s74, {PST}
    s_mul_i32 s45, s22, {32*2304}
    s_add_u32 s44, s44, s45
    s_mul_i32 s45, s93, 768
    s_add_u32 s44, s44, s45
    s_mul_i32 s45, s21, 192
    s_add_u32 s44, s44, s45
    s_add_u32 s44, s44, {PP}
    s_add_u32 s45, s44, {16*2304}""")
    for p in range(4):
        for q in (0, 1):
            t = 72+4*(2*p+q)
            for i in range(4): x = 8+4*(2*(2*p+(i>>1))+q)+2*(i&1); A(f"v_cvt_pk_bf16_f32 v{t+i}, v{x}, v{x+1}")
            A(f"ds_write_b128 v2, {R('v',t)} offset:{q*16384+p*1024}")
    lin(A, 2, 0, [(0, 4, 2304), (4, 2, 16)], 3)
    A("s_waitcnt lgkmcnt(0)\ns_barrier"); A.ds = []
    rd = lambda k: [A.d(f"ds_read_b128 {R('v',8+8*k+4*q)}, v1 offset:{q*16384+k*1024}", k) for q in (0, 1)]
    for k in range(4): rd(k)
    for k in range(16):
        if k+4 < 16: rd(k+4)
        A.wd(k)
        for i in range(3):
            for q in (0, 1): c = R('v',136+4*(2*i+q)); A(f"{M32} {c}, {R('a',4*(16*i+k))}, {R('v',8+8*k+4*q)}, {c if k else 0}")
    A.nop(8)
    for i in range(3):
        for q in (0, 1): A(f"buffer_store_dwordx4 {R('v',136+4*(2*i+q))}, v2, s[8:11], s{44+q} offen offset:{64*i} {sf}")
def woinit(A):
    o = [Op('tr', 12, 40+i, 1152, 6, [0,1,2], 48) for i in range(2)]
    g = Gemm(A, o, 4, 2, 0, 21, 44); insrd(A, 12, 40, 4718592)
    A(f"s_mul_i32 s40, s74, {512*1152}\ns_mul_i32 s41, s93, 384\ns_add_u32 s40, s40, s41\ns_add_u32 s41, s40, 192\ns_and_b32 s48, s21, 1\ns_mul_i32 s48, s48, 3")
    g.setup_load(); g.setup_comp()
    A("s_lshr_b32 s44, s21, 1\ns_mul_i32 s44, s44, 12288\ns_waitcnt lgkmcnt(0)")
    for i in range(3): A(f"v_add_u32 v{o[0].va+i}, s44, v{o[0].va+i}\nv_add_u32 v{o[1].va+i}, 49152, v{o[0].va+i}")
    for rnd in range(2):
        A("s_barrier")
        for b in range(4):
            for l in g.dma(b): A(l)
        A("s_waitcnt vmcnt(0)\ns_barrier")
        for b in range(4):
            for ks in range(2):
                for i in range(3):
                    for q in range(2): A(f"ds_read_b64_tr_b16 {R('a',4*(16*i+8*rnd+2*b+ks)+2*q,2)}, v{o[b>>1].va+i} offset:{(b&1)*24576+(32*ks+16*q)*192}")
        A("s_waitcnt lgkmcnt(0)")
def stDF(A, F, NS=6, lf="", sf="", part=False, wait=None):
    if F:
        d = Op('fr', 8, 41, 147456, 6, [0,1,2], 48, lf); t = Op('tr', 12, 40, 4096, 4, [0,1], 47)
        insrd(A, 12, 80, 18874368); insrd(A, 24, 88, 4096); insrd(A, 28, 96, 2359296)
        A(f"s_lshl_b32 s40, s22, 7\ns_mul_i32 s41, s23, {6*147456}\ns_add_u32 s41, s41, {UU}")
    else:
        d = Op('tr', 12, 41, 1152, 6, [0,1,2], 48); t = Op('fr', 8, 40, 131072, 4, [0,1], 47, lf)
        insrd(A, 12, 40, 4718592); insrd(A, 24, 0, 2359296)
        A(f"s_lshl_b32 s40, s22, 19\ns_add_u32 s40, s40, {OF}\ns_mul_i32 s41, s23, 192")
    if part: A(f"s_lshl_b32 s44, s19x, 14\ns_add_u32 s40, s40, s44\ns_mul_i32 s44, s19x, {512*1152}\ns_add_u32 s41, s41, s44".replace("s19x", "s74"))
    g = Gemm(A, [t, d], NS, 64, 0, 21, 44)
    A(f"""s_and_b32 s47, s21, 1
    s_lshl_b32 s47, s47, 1
    s_lshr_b32 s48, s21, 1
    s_mul_i32 s48, s48, 3
    s_lshl_b32 s44, s22, 2
    s_add_u32 s44, s44, s47
    s_lshl_b32 s44, s44, 4
    v_and_b32 v2, 15, v0
    v_add_u32 v2, s44, v2
    v_lshlrev_b32 v4, 1, v2
    v_mul_u32_u24 v2, 1152, v2
    s_mul_i32 s44, s23, 192
    s_lshl_b32 s45, s48, 5
    s_add_u32 s44, s44, s45
    v_lshrrev_b32 v3, 4, v0
    v_lshl_add_u32 v2, v3, 3, v2
    v_add_u32 v2, s44, v2
    v_add_u32 v3, 18432, v2
    s_mov_b32 s49, {HH}""")
    g.setup_load(); g.setup_comp(); A("s_waitcnt lgkmcnt(0)")
    for i in range(0 if part else 3):
        for j in range(2): A(f"buffer_load_dwordx2 {R('v',8+2*(2*i+j),2)}, v{2+j}, {'s[8:11], s49' if F else 's[24:27], 0'} offen offset:{32*i} {lf if F else ''}")
    if F: A("buffer_load_ushort v5, v4, s[24:27], 0 offen\nbuffer_load_ushort v6, v4, s[24:27], 0 offen offset:32")
    for i in range(24): A(f"v_mov_b32 v{24+i}, 0")
    mf = lambda ks: [f"{M32} {R('v',24+4*(2*i+j))}, {R('v',g.frag(d,i,ks))}, {R('v',g.frag(t,j,ks))}, {R('v',24+4*(2*i+j))}" for i in range(3) for j in range(2)]
    g.run(72 if F else 8 if part else 64, mf, "both", 46, wait)
    if part:
        A(f"s_mul_i32 s49, s74, {PST}\ns_add_u32 s49, s49, {PP}\nv_lshlrev_b32 v2, 1, v2\nv_lshlrev_b32 v3, 1, v3\ns_nop 4")
        for i in range(3):
            for j in range(2): A(f"buffer_store_dwordx4 {R('v',24+4*(2*i+j))}, v{2+j}, s[8:11], s49 offen offset:{64*i} {sf}")
        return
    if F: A("v_lshlrev_b32 v5, 16, v5\nv_lshlrev_b32 v6, 16, v6")
    A("s_nop 7")
    for i in range(3):
        for j in range(2):
            c = 24+4*(2*i+j); r = 8+2*(2*i+j)
            for k in range(4):
                if F: A(f"v_add_f32 v{c+k}, v{5+j}, v{c+k}")
                A((f"v_and_b32 v20, 0xffff0000, v{r+(k>>1)}" if k & 1 else f"v_lshlrev_b32 v20, 16, v{r+(k>>1)}") + f"\nv_add_f32 v{c+k}, v20, v{c+k}")
            A(f"v_cvt_pk_bf16_f32 v{r}, v{c}, v{c+1}\nv_cvt_pk_bf16_f32 v{r+1}, v{c+2}, v{c+3}")
            A(f"buffer_store_dwordx2 {R('v',r,2)}, v{2+j}, {'s[28:31], 0' if F else 's[8:11], s49'} offen offset:{32*i} {sf}")
    return g.SB*NS
def stE(A, body, sf=""):
    h = Op('tr', 8, 70, 1152, 6, [0,1,2], 73, 'sc1'); w = Op('tr', 56, 71, 9216, 8, [0,1,2,3], 72)
    insrd(A, 56, 64, 18874368)
    g = Gemm(A, [h, w], 2, 176, 0, 21, 44, 106496)
    A(f"""s_mul_i32 s70, s69, 192
    s_add_u32 s70, s70, {HN}
    s_lshl_b32 s71, s68, 8
    s_and_b32 s72, s21, 1
    s_lshl_b32 s72, s72, 2
    s_lshr_b32 s73, s21, 1
    s_mul_i32 s73, s73, 3
    s_lshl_b32 s44, s72, 5
    s_add_u32 s44, s44, s71
    v_lshrrev_b32 v2, 4, v0
    v_lshl_add_u32 v250, v2, 3, s44""")
    g.setup_load(); g.setup_comp(); A("s_waitcnt lgkmcnt(0)")
    for i in range(48): A(f"v_accvgpr_write_b32 a{192+i}, 0")
    mf = lambda ks: [f"{M32} {R('a',192+4*(3*i+j))}, {R('v',g.frag(w,i,ks))}, {R('v',g.frag(h,j,ks))}, {R('a',192+4*(3*i+j))}" for i in range(4) for j in range(3)]
    body(lambda wait: g.run(2, mf, "both", 46, wait))
    insrd(A, 24, 72, 9216); A("v_lshlrev_b32 v1, 4, v0\ns_waitcnt lgkmcnt(0)")
    for i in range(4): A(f"buffer_load_dwordx2 {R('v',8+2*i,2)}, v250, s[24:27], 0 offen offset:{32*i}")
    for i in range(48): A(f"v_accvgpr_read_b32 v{24+i}, a{192+i}")
    A("s_waitcnt vmcnt(0)")
    c0 = -2*0.7978845608028654*1.4426950408889634
    A(f"""s_mul_i32 s44, s69, 6
    s_add_u32 s44, s44, s73
    s_mul_i32 s44, s44, 147456
    s_lshl_b32 s45, s68, 3
    s_add_u32 s45, s45, s72
    s_lshl_b32 s45, s45, 9
    s_add_u32 s44, s44, s45
    s_add_u32 s44, s44, {UU}
    s_mov_b32 s45, {f2u(c0*0.044715)}
    v_mov_b32 v3, {f2u(c0)}""")
    b = g.fb
    for i in range(8): A(f"v_lshlrev_b32 v{b+2*i}, 16, v{8+i}\nv_and_b32 v{b+2*i+1}, 0xffff0000, v{8+i}")
    for j in range(3):
        for p in range(2):
            u = [24+4*(3*(2*p+(k>>2))+j)+(k&3) for k in range(8)]; t = [16+k for k in range(8)]
            for k in range(8): A(f"v_add_f32 v{u[k]}, v{b+8*p+k}, v{u[k]}\nv_mul_f32 v{t[k]}, v{u[k]}, v{u[k]}\nv_fma_f32 v{t[k]}, v{t[k]}, s45, v3\nv_mul_f32 v{t[k]}, v{t[k]}, v{u[k]}")
            for op in ("v_exp_f32 v{t}, v{t}", "v_add_f32 v{t}, 1.0, v{t}", "v_rcp_f32 v{t}, v{t}", "v_mul_f32 v{u}, v{t}, v{u}"):
                for k in range(8): A(op.format(t=t[k], u=u[k]))
            o = b+16+4*(2*j+p)
            for k in range(4): A(f"v_cvt_pk_bf16_f32 v{o+k}, v{u[2*k]}, v{u[2*k+1]}")
            A(f"buffer_store_dwordx4 {R('v',o)}, v1, s[8:11], s44 offen offset:{p*1024} {sf}")
        A("s_add_u32 s44, s44, 147456")
def stF(A, wait0, wait):
    insrd(A, 24, 88, 4096); insrd(A, 28, 96, 2359296)
    A("v_lshlrev_b32 v10, 4, v0")
    for i in range(1, 6): A(f"v_add_u32 v{10+i}, {147456*i}, v10")
    A(f"""s_mul_i32 s47, s21, 24576
    s_mul_i32 s40, s22, {4*147456}
    s_add_u32 s40, s40, {WF}
    s_mul_i32 s41, s23, {6*147456}
    s_lshl_b32 s44, s21, 10
    s_add_u32 s41, s41, s44
    s_add_u32 s40, s40, s44
    s_add_u32 s41, s41, {UU}
    s_waitcnt lgkmcnt(0)""")
    wait0()
    wl = lambda k: [f"buffer_load_dwordx4 {R('a',96+16*(k%6)+4*j)}, v{10+j}, s[8:11], s40 offen sc1" + ("\ns_add_u32 s40, s40, 4096" if j == 3 else "") for j in range(4)]
    ul = lambda k, i: f"buffer_load_dwordx4 {R('v',16+24*(k%6)+4*i)}, v{10+i}, s[8:11], s41 offen sc1" + ("\ns_add_u32 s41, s41, 4096" if i == 5 else "")
    A.vm = []
    for k in range(6):
        for l in wl(k): A.m(l, k)
    for i in range(96): A(f"v_accvgpr_write_b32 a{i}, 0")
    A(f"""s_lshl_b32 s44, s22, 2
    s_add_u32 s44, s44, s21
    s_lshl_b32 s44, s44, 4
    v_and_b32 v192, 15, v0
    v_add_u32 v192, s44, v192
    v_lshlrev_b32 v193, 1, v192
    v_mul_u32_u24 v192, 1152, v192
    v_lshrrev_b32 v194, 4, v0
    v_lshl_add_u32 v192, v194, 3, v192
    s_mul_i32 s48, s23, 192
    s_add_u32 s49, s48, {HH}""")
    A.m("buffer_load_ushort v193, v193, s[24:27], 0 offen")
    wait()
    for i in range(6): A.m(ul(0, i), 0)
    for i in range(6): A.m(f"buffer_load_dwordx2 {R('v',196+2*i,2)}, v192, s[8:11], s49 offen offset:{32*i} sc1")
    for k in range(1, 6):
        for i in range(6): A.m(ul(k, i), k)
    for k in list(range(12)) + list(range(30, 36)):
        if k == 6: A("s_mov_b32 s46, 4\nFLOOP:")
        if k == 30: A("s_sub_u32 s46, s46, 1\ns_cmp_lg_u32 s46, 0\ns_cbranch_scc1 FLOOP")
        if k < 12: A.wm(k)
        else: A(f"s_waitcnt vmcnt({10*(35-k)})")
        for i in range(6):
            for t in range(4):
                c = R('a', 4*(6*t+i)); A(f"{M32} {c}, {R('v',16+24*(k%6)+4*i)}, {R('a',96+16*(k%6)+4*t)}, {c}")
                if i == 5 and k < 30: A.m(wl(k)[t], k+6)
            if k < 30: A.m(ul(k, i), k+6)
    A("s_lshl_b32 s44, s21, 10\nv_add_u32 v2, s44, v10\nv_add_u32 v3, 49152, v2\nv_add_u32 v4, s47, v10\ns_nop 7\ns_barrier")
    for t in range(4):
        for i in range(6): A(f"ds_write_b128 v{2+(t>>1)}, {R('a',4*(6*t+i))} offset:{(t&1)*24576+i*4096}")
    A("s_waitcnt lgkmcnt(0)\ns_barrier\nv_lshlrev_b32 v193, 16, v193"); A.ds = []
    for i in range(6):
        for u in range(4): A.d(f"ds_read_b128 {R('v',16+16*i+4*u)}, v4 offset:{i*4096+u*1024}", i)
    for i in range(6):
        c = 16+16*i; r = 196+2*i
        for k in range(4): A((f"v_and_b32 v{6+k}, 0xffff0000, v{r+(k>>1)}" if k & 1 else f"v_lshlrev_b32 v{6+k}, 16, v{r+(k>>1)}") + f"\nv_add_f32 v{6+k}, v193, v{6+k}")
        A.wd(i)
        for u in range(4): A(f"v_pk_add_f32 v[6:7], v[6:7], {R('v',c+4*u,2)}\nv_pk_add_f32 v[8:9], v[8:9], {R('v',c+4*u+2,2)}")
        A(f"v_cvt_pk_bf16_f32 v{r}, v6, v7\nv_cvt_pk_bf16_f32 v{r+1}, v8, v9\nbuffer_store_dwordx2 {R('v',r,2)}, v192, s[28:31], s48 offen offset:{32*i}")
WF = 0xB000000
def w2t(A):
    insrd(A, 12, 80, 18874368); A("s_mul_i32 s47, s21, 24576")
    lin(A, 2, 0, [(4, 2, 2)], 3); A("v_and_b32 v3, 7, v0\nv_xor_b32 v2, v2, v3\nv_lshlrev_b32 v2, 4, v2\nv_lshrrev_b32 v3, 3, v0\nv_lshl_add_u32 v2, v3, 12, v2")
    for j in range(1, 4): A(f"v_add_u32 v{2+j}, {32768*j}, v2")
    lin(A, 10, 0, [(2, 4, 128), (0, 2, 8)], 11, "s47")
    for t in range(4): A(f"v_bfe_u32 v11, v0, 3, 2\nv_xor_b32 v11, {t}, v11\nv_lshl_add_u32 v{6+t}, v11, 5, v10")
    A("v_lshlrev_b32 v10, 4, v0\ns_waitcnt lgkmcnt(0)\ns_barrier")
    for rnd in range(2):
        for n in range(5):
            A(f"s_add_u32 s44, s7, {480*(5*rnd+n)}\ns_min_u32 s44, s44, 4607\ns_lshr_b32 s45, s44, 5\ns_and_b32 s44, s44, 31\ns_lshl_b32 s40, s45, 17\ns_lshl_b32 s41, s44, 7\ns_add_u32 s40, s40, s41")
            A(f"s_mul_i32 s44, s44, {4*147456}\ns_lshl_b32 s41, s45, 10\ns_add_u32 s44, s44, s41\ns_add_u32 s{60+n}, s44, {WF}")
            for j in range(4): A(f"s_add_u32 m0, s47, {n*4096+j*1024}\ns_nop 0\nbuffer_load_dwordx4 v{2+j}, s[12:15], s40 offen lds")
        A("s_waitcnt vmcnt(0)")
        for n in range(5):
            for t in range(4):
                for q in range(2): A(f"ds_read_b64_tr_b16 {R('v',16+16*n+4*t+2*q,2)}, v{6+t} offset:{n*4096+q*2048}")
            A("s_waitcnt lgkmcnt(0)")
            for t in range(4): A(f"buffer_store_dwordx4 {R('v',16+16*n+4*t)}, v10, s[8:11], s{60+n} offen sc1\ns_add_u32 s{60+n}, s{60+n}, 147456")
XB = 0xD000000
def wfr(k, j):
    n = 2*k+j
    return R('a', 4*n) if n < 48 else R('a', 240+4*(n-48)) if n < 52 else R('v', 96+4*(n-52))
def fidx(A):
    A("s_lshr_b32 s82, s2, 5\ns_lshl_b32 s82, s82, 1\ns_and_b32 s44, s2, 1\ns_add_u32 s82, s82, s44\ns_bfe_u32 s83, s2, 0x20003\ns_bfe_u32 s84, s2, 0x20001")
def fpre(A):
    fidx(A)
    A(f"""s_lshl_b32 s44, s82, 2
    s_add_u32 s44, s44, s21
    s_mul_i32 s44, s44, {2*147456}
    s_mul_i32 s45, s84, 36864
    s_add_u32 s44, s44, s45
    s_add_u32 s44, s44, {WF}
    v_lshlrev_b32 v252, 4, v0
    v_add_u32 v253, 147456, v252""")
    for k in range(36):
        for j in range(2): A(f"buffer_load_dwordx4 {wfr(k,j)}, v{252+j}, s[8:11], s44 offen offset:{(k%4)*1024} sc1")
        if k % 4 == 3: A("s_add_u32 s44, s44, 4096")
def stF2(A, wait, xsync):
    insrd(A, 24, 88, 4096); insrd(A, 28, 96, 2359296)
    A("v_lshlrev_b32 v1, 4, v0")
    for i in range(9): A(f"v_add_u32 v{2+i}, {147456*i}, v1")
    A(f"""v_add_u32 v11, 36864, v1
    v_add_u32 v12, {2*36864}, v1
    v_add_u32 v13, {3*36864}, v1
    s_mul_i32 s40, s83, {9*147456}
    s_mul_i32 s44, s84, 36864
    s_add_u32 s40, s40, s44
    s_lshl_b32 s44, s21, 10
    s_add_u32 s40, s40, s44
    s_add_u32 s40, s40, {UU}
    s_mul_i32 s47, s21, 9216""")
    dma = lambda s: [f"s_add_u32 m0, s47, {(s%4)*36864+i*1024}\ns_nop 0\nbuffer_load_dwordx4 v{2+i}, s[8:11], s40 offen sc1 lds" + ("\ns_add_u32 s40, s40, 4096" if i == 8 else "") for i in range(9)]
    rd = lambda k: [f"ds_read_b128 {R('v',24+36*(k&1)+4*i)}, v{(1,11,12,13)[(k>>2)%4]} offset:{(k&3)*9216+i*1024}" for i in range(9)]
    wait()
    if os.environ.get("TWICE"): A("s_mov_b32 s96, 0\ns_mov_b32 s97, s40\nFAG:"); stamp(A, 24, "s2", 251)
    for s in range(4):
        for l in dma(s): A(l)
    A("s_waitcnt vmcnt(27)\ns_barrier")
    if os.environ.get("TWICE"): stamp(A, 25, "s2", 251)
    for l in rd(0): A(l)
    for k in range(36):
        s = k >> 2; o = []
        if k % 4 == 3 and k < 35:
            A(f"s_waitcnt vmcnt({18 if s == 0 else 9 if s < 7 else 0})\ns_barrier")
            if 1 <= s < 6: o = dma(s+3)
        for i in range(9):
            A(f"s_waitcnt lgkmcnt({8 if k < 35 else 8-i})")
            for j in range(2):
                c = R('v', 176+4*(2*i+j)); A(f"{M32} {c}, {R('v',24+36*(k&1)+4*i)}, {wfr(k,j)}, {c if k else 0}")
                if j == 0 and k < 35: A(rd(k+1)[i])
                if j == 1 and o: A(o.pop(0))
    if os.environ.get("TWICE"): A("s_barrier\ns_mov_b32 s40, s97\ns_add_u32 s96, s96, 1\ns_cmp_eq_u32 s96, 1\ns_cbranch_scc1 FAG"); stamp(A, 23, "s2", 251)
    A(f"""s_lshl_b32 s44, s82, 2
    s_add_u32 s44, s44, s83
    s_lshl_b32 s75, s44, 7
    s_add_u32 s75, s75, {FL+32768}
    s_mul_i32 s44, s44, {16*9216}
    s_add_u32 s44, s44, {XB}
    s_lshl_b32 s45, s21, 2
    s_add_u32 s45, s45, s84
    s_mul_i32 s45, s45, 9216
    s_add_u32 s45, s45, s44
    s_mul_i32 s46, s84, {4*9216}
    s_add_u32 s46, s46, s44
    s_nop 3""")
    for n in range(9):
        for q in range(4): A(f"v_cvt_pk_bf16_f32 v{24+4*n+q}, v{176+8*n+2*q}, v{177+8*n+2*q}")
        A(f"buffer_store_dwordx4 {R('v',24+4*n)}, v1, s[8:11], s45 offen offset:{(n%4)*1024} sc1")
        if n % 4 == 3: A("s_add_u32 s45, s45, 4096")
    lin(A, 2, 0, [(0, 4, 1152), (4, 2, 8)], 3); lin(A, 3, 0, [(0, 4, 2)], 4)
    for u in range(1, 4): A(f"v_add_u32 v{3+u}, {9216*u}, v1")
    A(f"""v_add_u32 v7, 18432, v2
    s_min_u32 s44, s21, 2
    s_mul_i32 s45, s44, 3072
    s_add_u32 s46, s46, s45
    s_lshl_b32 s50, s82, 2
    s_add_u32 s50, s50, s84
    s_mul_i32 s45, s50, 36864
    s_lshl_b32 s50, s50, 6
    s_mul_i32 s44, s44, 96
    s_add_u32 s45, s45, s44
    s_mul_i32 s44, s83, 288
    s_add_u32 s60, s45, s44
    s_add_u32 s45, s60, {HH}
    buffer_load_ushort v20, v3, s[24:27], s50 offen
    buffer_load_ushort v21, v3, s[24:27], s50 offen offset:32""")
    for n in range(3):
        for j in range(2): A(f"buffer_load_dwordx2 {R('v',8+4*n+2*j,2)}, v{(2,7)[j]}, s[8:11], s45 offen offset:{32*n} sc1")
    xsync()
    A("s_cmp_eq_u32 s21, 3\ns_cbranch_scc1 BG_END")
    for n in range(3):
        for u in range(4): A(f"buffer_load_dwordx4 {R('v',64+16*n+4*u)}, v{(1,4,5,6)[u]}, s[8:11], s46 offen offset:{1024*n} sc1")
    A("v_lshlrev_b32 v20, 16, v20\nv_lshlrev_b32 v21, 16, v21")
    up = lambda d, r, k: f"v_and_b32 v{d}, 0xffff0000, v{r+(k>>1)}" if k & 1 else f"v_lshlrev_b32 v{d}, 16, v{r+(k>>1)}"
    for n in range(3):
        for k in range(8): A(up(24+k, 8+4*n, k) + f"\nv_add_f32 v{24+k}, v{20+(k>>2)}, v{24+k}")
        A(f"s_waitcnt vmcnt({8-2*n})")
        for u in range(4):
            for k in range(8): A(up(32+k, 64+16*n+4*u, k))
            for k in range(4): A(f"v_pk_add_f32 {R('v',24+2*k,2)}, {R('v',24+2*k,2)}, {R('v',32+2*k,2)}")
        for k in range(4): A(f"v_cvt_pk_bf16_f32 v{8+4*n+k}, v{24+2*k}, v{25+2*k}")
        for j in range(2): A(f"buffer_store_dwordx2 {R('v',8+4*n+2*j,2)}, v{(2,7)[j]}, s[28:31], s60 offen offset:{32*n}")
```

```python
from mk import *
SE = int(sys.argv[2]) if len(sys.argv) > 2 else 8
chain.PFD = int(os.environ.get('PFD', 1)); chain.DA, chain.DB, chain.DN, chain.DS = eval(os.environ.get('D', '4,3,14,3')); SW = 13; SA = int(sys.argv[6]) if len(sys.argv) > 6 else 8; NF = int(sys.argv[5]) if len(sys.argv) > 5 else 2; PFS = int(sys.argv[4]) if len(sys.argv) > 4 else 7
SC = int(sys.argv[3]) if len(sys.argv) > 3 else 8
def wait(A, off, sh, bits, full, srd='s[16:19]', io=0, SL=8, bar=True):
    l = A.lab("W")
    if bar: A(f"s_cmp_lg_u32 s21, 0\ns_cbranch_scc1 {l}_ok")
    A(f"""s_mov_b32 s79, 0
    {l}:
    buffer_load_dword v251, off, {srd}, s{off} offset:{io} sc1
    s_add_u32 s79, s79, 1
    s_cmp_gt_u32 s79, 0x40000
    s_cbranch_scc1 BG_END
    s_waitcnt vmcnt(0)
    v_readfirstlane_b32 s78, v251
    s_bfe_u32 s78, s78, {hex(sh | bits << 16)}
    s_cmp_eq_u32 s78, {full}
    s_cbranch_scc1 {l}_ok
    s_sleep {SL}
    s_branch {l}
    {l}_ok:""")
    if bar: A("s_barrier")
def signal(A, off, inc, bar=True, srd='s[16:19]', io=0):
    l = A.lab("S")
    A("s_waitcnt vmcnt(0)" + ("\ns_barrier" if bar else ""))
    A(f"""s_cmp_lg_u32 s21, 0
    s_cbranch_scc1 {l}
    v_mov_b32 v251, {inc}
    s_mov_b64 exec, 1
    buffer_atomic_add v251, off, {srd}, s{off} offset:{io} sc1
    s_mov_b64 exec, -1
    {l}:""")
def sr(A, idx, r, w=0):
    if DBG: A(f"s_sub_u32 s92, s77, {r}\ns_sub_u32 s90, s21, {w}\ns_or_b32 s92, s92, s90"); stamp(A, idx, "s92", 251)
def warm(A):
    l = A.lab("WARM")
    A("s_mov_b32 s5, 252"); wait(A, 5, 0, 8, 120)
    A("v_mbcnt_lo_u32_b32 v0, -1, 0\nv_mbcnt_hi_u32_b32 v0, -1, v0"); st.fpre(A)
def bg(A):
    st.pro(A)
    A("""s_sub_u32 s3, s3, 1
    s_lshr_b32 s4, s2, 3
    s_lshl_b32 s76, s3, 5
    s_add_u32 s76, s76, s4
    s_mul_i32 s77, s4, 7
    s_add_u32 s77, s77, s3
    s_mul_i32 s5, s76, 293
    s_lshr_b32 s5, s5, 11
    s_mul_i32 s6, s5, 7
    s_sub_u32 s6, s76, s6
    s_cmp_ge_u32 s77, 128
    s_cbranch_scc1 NOLN0
    s_mov_b32 s20, s77""")
    st.ln(A, False, "sc1")
    A("s_lshr_b32 s75, s77, 3\ns_lshl_b32 s75, s75, 2\ns_add_u32 s75, s75, 8"); signal(A, 75, 1, io=120); sr(A, 23, 0)
    A("NOLN0:"); a = st.StA(A, "sc1"); a.setup()
    A(f"""s_cmp_lt_u32 s6, {NF}
    s_cbranch_scc1 ALOOP
    s_sub_u32 s44, s6, {NF}
    s_lshl_b32 s44, s44, 2
    s_add_u32 s44, s44, s21
    s_mul_i32 s44, s44, {-(-1152//max(1, 28-4*NF))}
    v_add_u32 v247, s44, v0
    v_min_u32 v247, 0x47f, v247
    v_and_b32 v246, 1, v247
    v_lshrrev_b32 v247, 1, v247
    v_lshlrev_b32 v247, 13, v247
    v_lshl_add_u32 v247, v246, 7, v247
    s_lshl_b32 s44, s5, 8
    s_mov_b32 s75, 8""")
    if PFS: A("buffer_load_dword v248, v247, s[24:27], s44 offen\nbuffer_load_dword v249, v247, s[28:31], s44 offen\nbuffer_load_dword v250, v247, s[12:15], s44 offen")
    wait(A, 75, 4, 6, 32, SL=32)
    A("ALOOP:\ns_lshl_b32 s75, s6, 2\ns_add_u32 s75, s75, 8\ns_lshl_b32 s20, s6, 5\ns_add_u32 s20, s20, s5")
    a.item("sc1", lambda: (wait(A, 75, 0, 4, 8, io=120, SL=SA), stamp(A, 26, "s20", 251))); signal(A, 75, 16); stamp(A, 24, "s20", 251); sr(A, 25, 0)
    A("s_add_u32 s6, s6, 7\ns_cmp_lt_u32 s6, 16\ns_cbranch_scc1 ALOOP\ns_sub_u32 s76, s76, s3\ns_cmp_lt_u32 s77, 216\ns_cbranch_scc1 HASE")
    W = "s[8:11]"
    A("s_mov_b32 s6, 0"); wait(A, 6, 0, 8, 32)
    A(f"""LLOOP:
    s_lshl_b32 s5, s6, 2
    s_add_u32 s5, s5, s21
    s_lshl_b32 s20, s5, 3
    s_add_u32 s20, s20, s77
    s_sub_u32 s20, s20, 216
    s_lshl_b32 s75, s5, 7
    s_add_u32 s75, s75, {FL+4096}""")
    st.ln(A, True, "sc1", part=lambda: (wait(A, 75, 0, 8, 24, W, 0, 2, False), sr(A, 30, 216, 3)))
    A(f"""s_lshl_b32 s75, s6, 10
    s_add_u32 s75, s75, {FL+12288}
    v_lshlrev_b32 v2, 7, v0
    v_mov_b32 v3, 1
    s_waitcnt vmcnt(0)
    s_mov_b64 exec, 0xff
    buffer_atomic_add v3, v2, s[8:11], s75 offen sc1
    s_mov_b64 exec, -1""")
    sr(A, 31, 216, 3)
    A("s_add_u32 s6, s6, 1\ns_cmp_lt_u32 s6, 16\ns_cbranch_scc1 LLOOP\ns_branch CHW\nHASE:")
    A("s_mul_i32 s68, s76, 171\ns_lshr_b32 s68, s68, 10\ns_mul_i32 s69, s68, 6\ns_sub_u32 s69, s76, s69")
    A("s_cmp_ge_u32 s77, 96\ns_cbranch_scc1 NOWO\ns_and_b32 s74, s77, 7\ns_lshr_b32 s93, s77, 5"); st.woinit(A)
    A("s_branch WODONE\nNOWO:\ns_sub_u32 s7, s77, 96\ns_lshl_b32 s7, s7, 2\ns_add_u32 s7, s7, s21"); st.w2t(A)
    A("s_mov_b32 s75, 252"); signal(A, 75, 1); A("WODONE:")
    def body(chunk):
        A("s_mov_b32 s6, 0"); wait(A, 6, 0, 8, 32)
        A(f"""s_mov_b32 s94, 0
        s_cmp_ge_u32 s77, 96
        s_cbranch_scc1 ILOOP
        v_lshlrev_b32 v2, 2, v0
        s_mov_b32 s79, 0
        AW:
        buffer_load_dword v3, v2, s[16:19], 0 offen offset:8 sc1
        s_add_u32 s79, s79, 1
        s_cmp_gt_u32 s79, 0x40000
        s_cbranch_scc1 BG_END
        s_waitcnt vmcnt(0)
        v_and_b32 v3, 0x200, v3
        v_cmp_ne_u32 vcc, 0, v3
        s_sleep 32
        s_and_b32 s5, vcc_lo, 0xffff
        s_cmp_lg_u32 s5, 0xffff
        s_cbranch_scc1 AW
        ILOOP:
        s_cmp_eq_u32 s6, 16
        s_cbranch_scc1 DOE
        s_cmp_ge_u32 s77, 96
        s_cselect_b32 s95, 12, 15
        s_cbranch_scc1 DOW
        s_lshl_b32 s5, s6, 2
        s_add_u32 s75, s5, 8
        s_bfe_u32 s22, s77, 0x20003
        s_add_u32 s22, s22, s5
        s_lshl_b32 s23, s74, 2
        s_add_u32 s23, s23, s21""")
        def wc():
            A(f"""s_lshl_b32 s5, s23, 7
            s_add_u32 s5, s5, {FL}
            v_and_b32 v4, 3, v0
            s_mov_b32 s79, 0
            WC:
            buffer_load_ubyte v5, v4, s[8:11], s5 offen sc1
            s_add_u32 s79, s79, 1
            s_cmp_gt_u32 s79, 0x40000
            s_cbranch_scc1 BG_END
            s_waitcnt vmcnt(0)
            v_cmp_ge_u32 vcc, s22, v5
            s_nop 1
            s_cbranch_vccz WC_ok
            v_readfirstlane_b32 s78, v5
            s_cmp_eq_u32 s78, s22
            s_cbranch_scc1 WC_s
            s_sleep 40
            WC_s:
            s_sleep {SC}
            s_branch WC
            WC_ok:""")
        st.stC(A, "sc1", "sc1", sf="sc1", wait=wc)
        A(f"s_lshl_b32 s75, s22, 7\ns_add_u32 s75, s75, {FL+4096}"); signal(A, 75, 1, True, W, 0)
        A("DOW:\ns_cmp_lg_u32 s6, s95\ns_cbranch_scc1 DOE"); warm(A)
        A(f"DOE:\ns_cmp_lt_u32 s6, {SW}\ns_cselect_b32 s5, 2, 1\ns_add_u32 s5, s5, s94\ns_cmp_gt_u32 s5, s6\ns_cbranch_scc1 NOE\ns_lshl_b32 s5, s94, 3\ns_add_u32 s5, s5, s3\ns_lshl_b32 s5, s5, 7\ns_add_u32 s5, s5, {FL+12288}")
        chunk(lambda: (wait(A, 5, 0, 8, 32, W, 0, SE),))
        A("s_add_u32 s94, s94, 1\ns_branch DOE\nNOE:\ns_add_u32 s6, s6, 1\ns_cmp_lt_u32 s6, 17\ns_cbranch_scc1 ILOOP")
    st.stE(A, body, "sc1")
    A(f"""s_mul_i32 s75, s68, 57
    s_lshr_b32 s75, s75, 9
    s_lshl_b32 s75, s75, 1
    s_cmp_ge_u32 s69, 3
    s_addc_u32 s75, s75, 0
    s_lshl_b32 s75, s75, 9
    s_add_u32 s75, s75, {FL+28672}
    v_lshlrev_b32 v2, 7, v0
    v_mov_b32 v3, 1
    s_waitcnt vmcnt(0)
    s_barrier
    s_cmp_lg_u32 s21, 0
    s_cbranch_scc1 DOF
    s_mov_b64 exec, 15
    buffer_atomic_add v3, v2, s[8:11], s75 offen sc1
    s_mov_b64 exec, -1""")
    A(f"DOF:\ns_lshl_b32 s75, s84, 1\ns_lshr_b32 s5, s83, 1\ns_add_u32 s75, s75, s5\ns_lshl_b32 s75, s75, 2\ns_and_b32 s5, s82, 3\ns_add_u32 s75, s75, s5\ns_lshl_b32 s75, s75, 7\ns_add_u32 s75, s75, {FL+28672}")
    st.stF2(A, lambda: (wait(A, 75, 0, 8, 27, W, 0, 2), stamp(A, 28, "s2", 251)), lambda: (stamp(A, 22, "s2", 251), signal(A, 75, 1, True, W), wait(A, 75, 0, 8, 4, W, 0, 1)))
    A("s_waitcnt vmcnt(0)"); stamp(A, 29, "s2", 251)
    A("BG_END:")
def build2():
    A = Asm(); K = []; n = P + "_kernel"; chain.FLAGS = True
    A(f".globl {n}\n.p2align 8\n.type {n},@function\n{n}:\ns_cmp_ge_u32 s2, 256\ns_cbranch_scc1 K1E\ns_and_b32 s3, s2, 7\ns_cmp_lg_u32 s3, 0\ns_cbranch_scc1 BG")
    chain.gen_chain(A, None); A("CHW:"); warm(A); A("s_branch DOF\nK1E:\ns_endpgm\nBG:"); bg(A); A("s_waitcnt vmcnt(0)\ns_endpgm")
    K.append((n, 256, 163840, 512, 256))
    return fin(A, K)
if __name__ == "__main__":
    open(sys.argv[1] if len(sys.argv) > 1 else f"cdna_kernels/{P}.s", "w").write(build2())
```

```python
from asmlib import *
PFD = 1
DS = 3
DA, DB, DN, MODE, KVF = 0, 0, 8, 0, ''
LM, LS, LO = 147456, 156672, 161792
def wreg(name, t):
    if name == "q0": return R("a", 8*t, 8)
    if name == "q1": return R("a", 72+8*t, 8)
    if name == "k0": return R("a", 144+8*t, 8)
    if name == "v0": return R("a", 216+8*t, 8) if t < 5 else R("v", 224+8*(t-5), 8)
def wsub(name, t, q):
    base = {"q0": ("a", 8*t), "q1": ("a", 72+8*t), "k0": ("a", 144+8*t),
            "v0": ("a", 216+8*t) if t < 5 else ("v", 224+8*(t-5)),
            "k1": ("v", 152+8*t), "v1": ("v", 80+8*t), "o0": ("v", 8+8*t), "o1": ("v", 152+8*t)}[name]
    return R(base[0], base[1]+2*q, 2)
def gen_chain(A, prof=False, flags=False):
    A(f"""
    s_lshr_b32 s20, s2, 3
    v_lshrrev_b32 v1, 6, v0
    v_and_b32 v0, 63, v0
    s_load_dwordx4 s[40:43], s[0:1], 16
    s_load_dwordx4 s[44:47], s[0:1], 32
    s_load_dwordx2 s[48:49], s[0:1], 8
    s_load_dwordx4 s[52:55], s[0:1], 104
    v_readfirstlane_b32 s21, v1
    s_getreg_b32 s24, hwreg(HW_REG_XCC_ID, 0, 4)
    s_waitcnt lgkmcnt(0)""")
    A.srd(8, 54, WSZ); A.srd(16, 52, 256)
    stamp(A, 18, "s2", 1)
    A(f"""
    v_lshrrev_b32 v1, 3, v0
    v_lshlrev_b32 v1, 13, v1
    v_bfe_u32 v2, v0, 1, 2
    v_bfe_u32 v3, v0, 4, 1
    v_xor_b32 v2, v2, v3
    v_lshlrev_b32 v2, 5, v2
    v_and_b32 v3, 1, v0
    v_lshlrev_b32 v3, 4, v3
    v_add3_u32 v1, v1, v2, v3
    v_xor_b32 v2, 64, v1
    v_lshlrev_b32 v3, 4, v0
    s_lshl_b32 s25, s21, 10
    s_lshl_b32 s26, s21, 16
    s_lshl_b32 s27, s20, 8
    s_add_u32 s26, s26, s27
    s_mul_i32 s27, s20, 147456
    s_add_u32 s27, s27, s25""")
    chunks = [("k1",42,1),("v1",44,1),("k0",42,0),("v0",44,0),("q0",40,0),("q1",40,1),("o0",46,0),("o1",46,1)]
    def issue(c):
        nm, b, j = chunks[c]
        A.srd(12, b, 4718592)
        for ii in range(18):
            A(f"s_add_u32 m0, s25, {(c&1)*73728 + ii*4096}")
            if nm[0] == "o":
                A(f"s_add_u32 s28, s27, {j*73728 + ii*4096}")
                A.m(f"buffer_load_dwordx4 v3, s[12:15], s28 offen lds", f"c{c}")
            else:
                A(f"s_add_u32 s28, s26, {ii*4*65536 + j*128}")
                A.m(f"buffer_load_dwordx4 v{1+(ii&1)}, s[12:15], s28 offen lds", f"c{c}")
    issue(0); issue(1)
    A(f"""
    v_mov_b32 v8, 0
    v_mov_b32 v9, 0
    v_mov_b32 v10, 0
    v_mov_b32 v11, 0
    v_lshrrev_b32 v4, 3, v0
    v_lshlrev_b32 v4, 12, v4
    v_and_b32 v5, 7, v0
    v_lshl_add_u32 v4, v5, 4, v4
    s_lshl_b32 s28, s20, 7
    s_add_u32 s28, s28, {HA}""")
    for i in range(9):
        A(f"s_add_u32 s29, s28, {i*32768}")
        A.m(f"buffer_store_dwordx4 v[8:11], v4, s[8:11], s29 offen sc1")
    A(f"s_mov_b32 s29, {HB}")
    for i in range(9):
        A.m(f"buffer_store_dwordx4 v[8:11], v3, s[8:11], s29 offen offset:{(i%4)*1024} sc1")
        if i % 4 == 3: A(f"s_add_u32 s29, s29, 4096")
    if FLAGS:
        A(f"s_and_b32 s29, s20, 15\ns_lshl_b32 s29, s29, 2\ns_add_u32 s29, s29, s21\ns_lshl_b32 s29, s29, 10\ns_add_u32 s29, s29, {FL}")
        for i in range(1): A.m(f"buffer_store_dwordx4 v[8:11], v3, s[8:11], s29 offen offset:{i*1024} sc1")
    A(f"""
    v_bfe_u32 v6, v0, 4, 1
    v_bfe_u32 v7, v0, 5, 1
    v_bfe_u32 v8, v0, 2, 2
    v_lshlrev_b32 v4, 5, v6
    v_lshl_add_u32 v4, v7, 3, v4
    v_add_u32 v4, v4, v8
    v_lshlrev_b32 v4, 7, v4
    v_lshrrev_b32 v9, 1, v8
    v_lshl_add_u32 v10, v6, 1, v9
    v_xor_b32 v10, s21, v10
    v_lshl_add_u32 v4, v10, 5, v4
    v_and_b32 v10, 3, v0
    v_lshl_add_u32 v4, v10, 3, v4
    v_lshlrev_b32 v5, 4, v7
    v_lshl_add_u32 v5, v6, 2, v5
    v_lshl_add_u32 v5, v9, 3, v5
    v_and_b32 v8, 1, v8
    v_add_u32 v5, v5, v8
    v_mul_u32_u24 v5, 1152, v5
    v_lshl_add_u32 v5, v10, 3, v5
    s_mul_i32 s28, s21, 288
    v_add_u32 v5, s28, v5""")
    for c in range(8):
        nm = chunks[c][0]
        if c == 0:
            A("s_waitcnt vmcnt(0)\ns_barrier")
            lb = A.lab("NOSIG")
            A(f"""s_cmp_lg_u32 s21, 0
            s_cbranch_scc1 {lb}
            s_lshl_b32 s28, 1, s24
            v_mov_b32 v6, s28
            v_mov_b32 v7, 0
            s_mov_b64 exec, 1
            buffer_atomic_or v6, v7, s[16:19], 0 offen offset:4 sc0
            s_waitcnt vmcnt(0)
            v_mov_b32 v6, 1
            buffer_atomic_add v6, v7, s[16:19], 0 offen
            s_waitcnt vmcnt(0)
            s_mov_b64 exec, -1
            {lb}:""")
        else:
            A.wm(f"c{c}"); A("s_barrier")
        if c == 7:
            A(f"s_mul_i32 s28, s21, 18432\nv_add_u32 v6, s28, v3")
            for t in range(18): A(f"ds_write_b128 v6, {R('v',152+4*t)} offset:{t*1024}")
            A("s_waitcnt lgkmcnt(0)")
        if nm[0] == "o":
            A(f"v_add_u32 v6, {(c&1)*73728}, v5")
            for q in range(4):
                A(f"ds_read_b64_tr_b16 {wsub(nm,8,q)}, v6 offset:{(32*(q>>1)+2*(q&1))*1152+32*8}")
            A(f"""v_bfe_u32 v7, v0, 5, 1
            v_mul_u32_u24 v7, {8*1152}, v7
            v_sub_u32 v6, v6, v7
            v_bfe_u32 v7, v0, 3, 1
            v_mul_u32_u24 v7, {8*1152-32}, v7
            v_sub_u32 v6, v6, v7""")
            for T in range(8):
                for q in range(4):
                    A(f"ds_read_b64_tr_b16 {wsub(nm,T,q)}, v6 offset:{(32*(T&1)+16*(q>>1)+2*(q&1))*1152+64*(T>>1)}")
        else:
            A(f"v_add_u32 v6, {(c&1)*73728}, v4\nv_add_u32 v7, {(c&1)*73728+32768}, v4")
            for t in range(9):
                for q in range(4):
                    o = (64*t+16*(q>>1)+4*(q&1))*128
                    A(f"ds_read_b64_tr_b16 {wsub(nm,t,q)}, v{6 if t<4 else 7} offset:{o if t<4 else o-32768}")
        A("s_waitcnt lgkmcnt(0)")
        if c < 6:
            A("s_barrier"); issue(c+2)
    A(f"s_barrier\ns_mul_i32 s28, s21, 18432\ns_add_u32 s28, s28, 73728\nv_add_u32 v6, s28, v3")
    for t in range(18): A(f"ds_write_b128 v6, {R('v',80+4*t)} offset:{t*1024}")
    A("s_waitcnt lgkmcnt(0)")
    for i in range(72): A(f"v_mov_b32 v{80+i}, v{8+i}")
    A.srd(12, 48, 9216)
    A(f"s_lshl_b32 s28, s21, 6\nv_add_u32 v6, s28, v0")
    for i in range(3):
        A(f"v_add_u32 v7, {i*256}, v6\nv_min_u32 v7, 575, v7\nv_lshlrev_b32 v8, 1, v7\nv_lshlrev_b32 v7, 4, v7\nv_add_u32 v7, {LM}, v7")
        for r in range(8):
            A(f"buffer_load_ushort v{20+r}, v8, s[12:15], 0 offen offset:{(r%3)*1152}")
            if r % 3 == 2: A("v_add_u32 v8, 3456, v8")
        A("s_waitcnt vmcnt(0)")
        for r in range(4): A(f"v_lshl_or_b32 v{12+r}, v{21+2*r}, 16, v{20+2*r}")
        A("ds_write_b128 v7, v[12:15]\ns_waitcnt lgkmcnt(0)")
    A(f"""
    v_mov_b32 v14, v0
    v_and_b32 v15, 15, v14
    v_lshrrev_b32 v16, 4, v14
    v_lshlrev_b32 v17, 4, v14
    v_add_u32 v0, {LS}, v17
    s_mul_i32 s28, s21, 18432
    v_add_u32 v1, s28, v17
    v_bfe_u32 v18, v14, 3, 1
    v_lshlrev_b32 v2, 2, v18
    v_bfe_u32 v18, v14, 2, 1
    v_add_u32 v2, v2, v18
    v_bfe_u32 v18, v14, 1, 1
    v_lshl_add_u32 v2, v18, 1, v2
    v_lshl_add_u32 v2, v16, 3, v2
    v_lshlrev_b32 v2, 4, v2
    v_and_b32 v18, 1, v14
    v_lshl_add_u32 v2, v18, 3, v2
    v_add_u32 v2, {LM}, v2
    s_mul_i32 s28, s21, 1280
    v_add_u32 v3, s28, v0
    v_and_b32 v4, 31, v14
    v_lshlrev_b32 v4, 3, v4
    v_add_u32 v4, {LS+1024}, v4
    v_add_u32 v5, s28, v4
    v_and_b32 v18, 1, v16
    v_lshrrev_b32 v19, 1, v16
    v_lshlrev_b32 v6, 4, v15
    v_lshl_add_u32 v6, v18, 3, v6
    v_lshl_add_u32 v6, v19, 7, v6
    s_lshl_b32 s28, s21, 8
    s_add_u32 s28, s28, {LO}
    v_add_u32 v6, s28, v6
    s_mul_i32 s29, s20, 3
    s_add_u32 s29, s29, s21
    s_lshl_b32 s30, s29, 7
    s_add_u32 s30, s30, {HB}
    s_sub_u32 s30, s30, s28
    s_lshl_b32 s31, s29, 12
    s_add_u32 s31, s31, {HA-LS}
    v_lshl_add_u32 v7, v18, 1, v19
    v_lshl_add_u32 v7, v7, 4, v15
    s_mul_i32 s28, s21, 144
    v_add_u32 v7, s28, v7
    s_add_u32 s28, s28, 128
    v_add_u32 v8, s28, v15
    v_lshrrev_b32 v20, 3, v7
    v_and_b32 v7, 7, v7
    v_lshlrev_b32 v7, 4, v7
    v_lshl_add_u32 v7, v20, 12, v7
    v_lshrrev_b32 v20, 3, v8
    v_and_b32 v8, 7, v8
    v_lshlrev_b32 v8, 4, v8
    v_lshl_add_u32 v8, v20, 12, v8
    v_lshl_add_u32 v8, v18, 3, v8
    v_lshl_add_u32 v8, v19, 2, v8
    s_lshl_b32 s32, s20, 7
    s_add_u32 s32, s32, {HA}
    s_add_u32 s33, s32, 32768
    s_mul_i32 s28, s21, 2304
    s_add_u32 s28, s28, {LM}
    v_add_u32 v9, s28, v17
    s_add_u32 s28, s28, 2048
    v_and_b32 v10, 31, v14
    v_lshl_add_u32 v10, v10, 3, s28
    s_mov_b32 s34, {HB-LM}
    s_mov_b32 s60, 0xff00ff00
    s_mov_b32 s61, 0xff00ff00
    s_mov_b32 s62, 0x00ff00ff
    s_mov_b32 s63, 0x00ff00ff
    s_mov_b32 s64, -1
    s_mov_b32 s65, 0
    v_mov_b32 v11, 0x4444
    v_mov_b32 v18, 0xeeee
    v_cndmask_b32 v11, v11, v18, s[60:61]
    v_and_b32 v18, 7, v15
    v_and_b32 v19, 1, v16
    v_lshlrev_b32 v19, 2, v19
    v_sub_u32 v18, v18, v19
    v_mov_b32 v12, 0
    v_mov_b32 v13, 0
    v_mov_b32 v20, 0x3f80
    v_mov_b32 v21, 0x3f800000
    v_cmp_eq_u32 vcc, 0, v18
    s_nop 1
    v_cndmask_b32 v12, v12, v20, vcc
    v_cmp_eq_u32 vcc, 1, v18
    s_nop 1
    v_cndmask_b32 v12, v12, v21, vcc
    v_cmp_eq_u32 vcc, 2, v18
    s_nop 1
    v_cndmask_b32 v13, v13, v20, vcc
    v_cmp_eq_u32 vcc, 3, v18
    s_nop 1
    v_cndmask_b32 v13, v13, v21, vcc
    v_and_b32 v18, 7, v15
    v_lshrrev_b32 v18, 1, v18
    v_cmp_eq_u32 s[66:67], 0, v18
    v_cmp_eq_u32 s[68:69], 1, v18
    v_cmp_eq_u32 s[70:71], 2, v18
    v_cmp_eq_u32 s[72:73], 3, v18
    s_mov_b32 s74, 0xaaaaaaaa
    s_mov_b32 s75, 0xaaaaaaaa
    s_lshl_b32 s35, s20, 13
    s_lshl_b32 s28, s21, 11
    s_add_u32 s36, s35, s28
    s_add_u32 s37, s36, {VF-LS}
    s_add_u32 s36, s36, {KF-LS}
    s_add_u32 s35, s35, {KF+PFD*262144-8*LS}
    s_lshl_b32 s28, s21, 8
    s_add_u32 m0, s28, {LO}
    s_mov_b32 s84, 0xffff0000
    s_mov_b32 s85, s84
    s_lshl_b32 s38, s20, 12
    s_lshl_b32 s28, s21, 10
    s_add_u32 s38, s38, s28
    s_add_u32 s39, s38, {VM-LS}
    s_add_u32 s38, s38, {KM-LS}
    s_mov_b32 s76, {f2u(128**-0.5*1.4426950408889634)}
    s_mov_b32 s77, 0x3f803f80
    s_mov_b32 s22, 0
    s_mov_b32 s23, 1
    s_cmp_lt_u32 s20, 24
    s_cselect_b32 s78, 1, 0
    s_cmp_lt_u32 s21, 3
    s_cselect_b32 s78, s78, 0
    v_mov_b32 v20, 0
    s_mov_b32 s79, 0""")
    lw = A.lab("HS")
    A(f"""{lw}:
    buffer_load_dwordx2 v[18:19], v20, s[16:19], 0 offen sc1
    s_add_u32 s79, s79, 1
    s_cmp_gt_u32 s79, 0x100000
    s_cbranch_scc1 CH_END
    s_waitcnt vmcnt(0)
    v_readfirstlane_b32 s28, v18
    v_readfirstlane_b32 s29, v19
    s_cmp_lt_u32 s28, 32
    s_cbranch_scc1 {lw}
    s_bcnt1_i32_b32 s29, s29""")
    if FLAGS:
        A(f"s_lshl_b32 s81, s20, 7\ns_cmp_eq_u32 s21, 3\ns_cselect_b64 s[40:41], 1, 0\ns_add_u32 s81, s81, {FL}\ns_mov_b32 s80, 0"); stamp(A, 19, "s2", 18); rdy(A, 18); stamp(A, 20, "s2", 18)
    A(f"""s_cmp_eq_u32 s29, 1
    s_cbranch_scc0 CH_SLOW""")
    pass
    loop(A, "F", "", prof)
    A("CH_SLOW:")
    loop(A, "S", "sc1", False)
    A(f"CH_LAST:\nbuffer_store_dwordx4 v[76:79], v0, s[8:11], s39 offen {KVF}\nCH_END:")
    if FLAGS: A("s_waitcnt vmcnt(0)\ns_barrier\nv_mov_b32 v14, s22\nv_add_u32 v14, 1, v14\nbuffer_store_byte v14, off, s[8:11], s81 sc1")
    stamp(A, 21, "s2", 14)

FLAGS = False
def rdy(A, v):
    l = A.lab("RDY")
    A(f"""s_mov_b32 s79, 0
    {l}:
    s_add_u32 s28, s22, {PFD}
    s_cmp_lt_u32 s28, s80
    s_cbranch_scc1 {l}_ok
    v_mbcnt_lo_u32_b32 v{v}, -1, 0
    v_lshlrev_b32 v{v}, 2, v{v}
    buffer_load_dword v{v}, v{v}, s[16:19], 0 offen offset:8 sc1
    s_add_u32 s79, s79, 1
    s_cmp_gt_u32 s79, 0x100000
    s_cbranch_scc1 CH_END
    s_waitcnt vmcnt(0)
    v_and_b32 v{v}, 0x200, v{v}
    v_cmp_ne_u32 vcc, 0, v{v}
    s_nop 1
    s_and_b32 s28, vcc_lo, 0xffff
    s_ff0_i32_b32 s28, s28
    s_lshl_b32 s80, s28, 2
    s_cmp_eq_u32 s28, 16
    s_cselect_b32 s80, 0x3e8, s80
    s_cmp_lg_u32 s80, 0
    s_cbranch_scc1 {l}
    s_sleep 24
    s_branch {l}
    {l}_ok:""")
def loop(A, X, stf, prof):
    PA = f"v_mov_b32 v40, {LS+VF-KF + (262144 if os.environ.get('VN') else 0)}\nv_mov_b32 v41, {LS+(262144 if not os.environ.get('VO') else VF-KF)}\nv_cndmask_b32 v40, v40, v41, s[84:85]\nv_and_b32 v39, 0xf0, v0\nv_lshl_add_u32 v39, v39, 3, v40"
    PL = "buffer_load_dword v39, s[8:11], s36 offen sc1 lds"
    NP = 0 if os.environ.get("NOPF") else 1
    if not NP: PA = PL = "s_nop 0"
    SM = "v_smfmac_f32_16x16x64_bf16"
    M32 = "v_mfma_f32_16x16x32_bf16"; M16 = "v_mfma_f32_16x16x16_bf16"
    DPP = "row_ror:8 row_mask:0xf bank_mask:0xf"
    def stamp_(i):
        if prof: A(f"s_memtime s[{86+2*i}:{87+2*i}]")
    def ldA(t, slot, tag):
        A.d(f"ds_read_b64_tr_b16 v[{slot}:{slot+1}], v2 offset:{t*1024}", tag)
        A.d(f"ds_read_b64_tr_b16 v[{slot+2}:{slot+3}], v2 offset:{t*1024+512}", tag)
    def ldW(t, b, tag):
        A.d(f"ds_read_b128 {R('v',22+8*b)}, v1 offset:{t*2048}", tag)
        A.d(f"ds_read_b128 {R('v',26+8*b)}, v1 offset:{t*2048+1024}", tag)
    def pre():
        for i in range(50, 74): A(f"v_mov_b32 v{i}, 0")
        ldW(0, 0, "k0"); ldW(1, 1, "k1")
    pre()
    A.m(f"buffer_load_dwordx4 v[14:17], v0, s[8:11], s36 offen sc1", "kx")
    A.m(f"buffer_load_dwordx4 v[18:21], v0, s[8:11], s36 offen offset:1024 sc1", "kx")
    A(f"buffer_store_dwordx4 v[76:79], v0, s[8:11], s39 offen {KVF}\ns_mov_b32 s82, 0\n{PA}")
    A(f"s_waitcnt lgkmcnt(0)\nSTEP{X}:\ns_barrier\n{PL}")
    stamp_(0)
    A.ds = []; A.vm = ["kx", None] + [None]*NP
    for t in range(3): ldA(t, 38+4*t, f"a{t}")
    for t in range(9):
        sl = R("v", 38+4*(t%3)); u = t-1
        A.wd(f"a{t}")
        A(f"{SM} v[50:53], {sl}, {wreg('q0',t)}, v11")
        if 1 <= t <= 7: ldW(t+1, u&1, f"k{t+1}")
        if t == 8: ldW(0, 1, "p0")
        A(f"{SM} v[54:57], {sl}, {wreg('q1',t)}, v11")
        if 1 <= t <= 6: ldA(t+2, 38+4*(u%3), f"a{t+2}")
        if t >= 7: ldA(t-7, 38+4*(u%3), f"p{t-7}")
        A(f"{SM} v[58:61], {sl}, {wreg('k0',t)}, v11")
        if t == 7: A("v_add_u32 v1, 73728, v1")
        if t == 3: A(f"s_waitcnt vmcnt({3+NP})")
        if t >= 2: A.wd(f"k{t}")
        A(f"{SM} v[62:65], {sl}, {R('v',22+8*(t&1),8)}, v11")
        if 3 <= t <= 6: A(f"v_mov_b64 v[{66+2*(t-3)}:{67+2*(t-3)}], 0")
    ldW(1, 0, "p1")
    stamp_(1)
    def pair(t, fill=""):
        sl = R("v", 38+4*(t&1))
        A.wd(f"p{t}")
        A(f"{SM} v[70:73], {sl}, {R('v',22+8*((t+1)&1),8)}, v11")
        if t+2 < 9: ldW(t+2, (t+1)&1, f"p{t+2}")
        if fill: A(fill)
        A(f"{SM} v[66:69], {sl}, {wreg('v0',t)}, v11")
        if t+2 < 9: ldA(t+2, 38+4*(t&1), f"p{t+2}")
    def pld(t): pass
    pa = lambda d, a: A(f"v_pk_add_f32 {R('v',d,2)}, {R('v',d,2)}, {R('v',a,2)}")
    pair(0); pld(2); A.nop(2)
    pk = [74, 76, 78, 46]
    for i in range(4):
        A(f"v_cvt_pk_bf16_f32 v{pk[i]}, v{50+4*i}, v{51+4*i}\nv_cvt_pk_bf16_f32 v{pk[i]+1}, v{52+4*i}, v{53+4*i}")
    for i in range(4):
        A(f"{M16} {R('v',50+4*i)}, {R('v',pk[i],2)}, v[12:13], 0")
    pair(1); pld(3); A.nop(1)
    pk = [74, 76, 46, 48]
    for i in range(4):
        A(f"v_cvt_pk_bf16_f32 v{pk[i]}, v{50+4*i}, v{51+4*i}\nv_cvt_pk_bf16_f32 v{pk[i]+1}, v{52+4*i}, v{53+4*i}")
    A.wm("kx")
    A(f"{M32} v[54:57], v[14:17], v[74:77], 0")
    A(f"{M32} v[58:61], v[18:21], v[74:77], 0")
    A(f"{M32} v[50:53], v[46:49], v[74:77], 0")
    A.m(f"buffer_load_dwordx4 v[14:17], v0, s[8:11], s37 offen sc1", "vx")
    A.m(f"buffer_load_dwordx4 v[18:21], v0, s[8:11], s37 offen offset:1024 sc1", "vx")
    pair(2); pld(4)
    for r in range(4): A(f"v_cndmask_b32 v{62+r}, v{54+r}, v{58+r}, s[60:61]")
    for r in range(2): A(f"v_cndmask_b32 v{78+r}, v{50+r}, v{52+r}, s[60:61]")
    A.d("ds_write_b128 v3, v[62:65]", "sw"); A.d("ds_write_b64 v5, v[78:79]", "sw")
    A.m(f"buffer_store_dwordx4 v[46:49], v0, s[8:11], s38 offen {KVF}")
    if FLAGS: A("v_mov_b32 v54, s82\ns_mov_b64 exec, s[40:41]"); A.m("buffer_store_byte v54, off, s[8:11], s81 sc1")
    A("s_mov_b64 exec, -1")
    pair(3); A.wd("sw"); A("s_barrier")
    stamp_(2)
    mr = [74, 76, 78, 46]
    for i in range(4):
        A.d(f"ds_read_b128 {R('v',50+4*i)}, v0 offset:{i*1280}", f"s{i}")
        A.d(f"ds_read_b64 {R('v',mr[i],2)}, v4 offset:{i*1280}", f"s{i}")
    pld(5); pair(4); pld(6)
    A.wd("s1")
    pa(50, 54); pa(52, 56); pa(74, 76)
    A.wd("s3")
    pa(58, 62); pa(60, 64); pa(78, 46); pa(50, 58); pa(52, 60); pa(74, 78)
    A("v_max3_f32 v54, v50, v51, v52\nv_max3_f32 v54, v54, v53, v74")
    pair(5, "v_max_f32 v54, v54, v75")
    A(f"v_max_f32_dpp v54, v54, v54 {DPP}\nv_mov_b32 v55, v54")
    A("v_mov_b32 v60, s77\nv_mov_b32 v61, s77")
    A("v_permlane16_swap_b32 v54, v55\nv_max_f32 v54, v54, v55")
    pair(6, "v_mov_b32 v55, v54")
    A("v_permlane32_swap_b32 v54, v55\nv_max_f32 v54, v54, v55\nv_mul_f32 v54, s76, v54")
    pair(7, "\n".join(f"v_pk_fma_f32 {R('v',r,2)}, {R('v',r,2)}, s[76:77], v[54:55] op_sel_hi:[1,0,0] neg_lo:[0,0,1] neg_hi:[0,0,1]" for r in (50, 52, 74)))
    for r in (50, 51, 52, 53, 74, 75): A(f"v_exp_f32 v{r}, v{r}")
    pair(8, "v_mov_b64 v[62:63], v[60:61]\nv_cndmask_b32 v64, 0, v60, s[64:65]\nv_cndmask_b32 v65, 0, v60, s[64:65]")
    A("v_cvt_pk_bf16_f32 v54, v50, v51\nv_cvt_pk_bf16_f32 v55, v52, v53\nv_cvt_pk_bf16_f32 v58, v74, v75")
    A(f"v_mov_b32_dpp v56, v54 {DPP}\nv_mov_b32_dpp v57, v55 {DPP}\nv_mov_b32_dpp v59, v58 {DPP}\nv_subrev_u32 v1, 73728, v1")
    A.wm("vx")
    A(f"{M32} v[30:33], v[60:63], v[54:57], 0")
    A("v_cvt_pk_bf16_f32 v78, v70, v71\nv_cvt_pk_bf16_f32 v79, v72, v73")
    A(f"{M32} v[22:25], v[14:17], v[54:57], 0")
    A("v_cvt_pk_bf16_f32 v76, v66, v67\nv_cvt_pk_bf16_f32 v77, v68, v69")
    A(f"{M32} v[26:29], v[18:21], v[54:57], 0")
    A(f"{M16} v[30:33], v[64:65], v[58:59], v[30:33]")
    A(f"{M16} v[22:25], v[76:77], v[58:59], v[22:25]")
    A(f"{M16} v[26:29], v[78:79], v[58:59], v[26:29]")
    A(f"""s_cmp_eq_u32 s22, 63
    s_cbranch_scc1 CH_LAST
    s_nop 0
    v_lshrrev_b32 v67, 1, v0
    v_and_b32 v67, 0x180, v67
    v_and_b32 v66, 0xfffffc7f, v0
    v_or_b32 v67, v66, v67
    v_rcp_f32 v30, v30
    s_mov_b64 exec, s[62:63]""")
    for r in range(4): A(f"v_pk_mul_f32 {R('v',22+2*r,2)}, {R('v',22+2*r,2)}, v[30:31] op_sel_hi:[1,0]")
    for r in range(4): A(f"v_cvt_pk_bf16_f32 v{34+r}, v{22+2*r}, v{23+2*r}")
    A.d("ds_write_b64 v6, v[34:35]"); A.d("ds_write_b64 v6, v[36:37] offset:1024", "ow")
    A("s_mov_b64 exec, -1")
    for i in range(38, 48, 2): A(f"v_mov_b64 v[{i}:{i+1}], 0")
    A.wd("ow"); A("s_barrier")
    stamp_(3)
    A.d("ds_read_b128 v[30:33], v0 offset:5120", "o4"); A.d("ds_read_b128 v[34:37], v0 offset:6144", "o5")
    for k in range(4): A.d(f"ds_read_b128 {R('v',14+4*k)}, v67 offset:{5120+512*k}", f"o{k}")
    for i in range(48, 58, 2): A(f"v_mov_b64 v[{i}:{i+1}], 0")
    def pf():
        A(f"v_lshlrev_b32 v68, 3, v0\ns_add_u32 s28, s35, {VF-KF}\ns_mov_b64 exec, s[84:85]")
        A.m("buffer_load_dword v68, s[8:11], s35 offen sc1 lds")
        if os.environ.get("P64"): A.m("buffer_load_dword v68, s[8:11], s35 offen offset:64 sc1 lds"); A.m("buffer_load_dword v68, s[8:11], s28 offen offset:64 sc1 lds")
        A.m("buffer_load_dword v68, s[8:11], s28 offen sc1 lds\ns_mov_b64 exec, -1")
    def wo(p, k): A(f"{SM} {R('v',38+4*p)}, {R('v',14+4*k)}, {R('v',80+72*(k>>1)+16*p+8*(k&1),8)}, v11")
    def quad(b, o):
        out = [f"v_cvt_pk_bf16_f32 v{o+r}, v{b+2*r}, v{b+2*r+1}" for r in range(4)]
        out += [f"v_and_or_b32 v{o+r}, v{o+r}, -2, s23" for r in range(4)]
        return out + ["s_nop 0", f"v_permlane16_swap_b32 v{o}, v{o+2}", f"v_permlane16_swap_b32 v{o+1}, v{o+3}"]
    t8 = ["s_nop 0", "s_nop 0", "s_nop 0"] + """v_permlane32_swap_b32 v54, v56
    v_permlane32_swap_b32 v55, v57
    v_add_f32 v54, v54, v56
    v_add_f32 v55, v55, v57
    v_cvt_pk_bf16_f32 v66, v54, v55
    v_and_or_b32 v66, v66, -2, s23""".split("\n") + [f"buffer_store_dword v66, v8, s[8:11], s32 offen {stf}"]
    A("s_nop 0")
    for t in range(2):
        A.wd(f"o{4+t}"); A(f"{SM} v[54:57], {R('v',30+4*t)}, {R('v',80+72*t+64,8)}, v11")
    for k in range(4):
        A.wd(f"o{k}"); wo(0, k); A(t8.pop(0))
        if k >= 2: A(t8.pop(0))
        wo(1, k); A(t8.pop(0))
    assert not t8
    q0 = ["s_nop 2", "s_nop 2"] + quad(38, 58) + [f"buffer_store_dwordx4 v[58:61], v7, s[8:11], s32 offen {stf}"]
    for k in range(4):
        for p in (2, 3):
            wo(p, k)
            for _ in range(2 if k else 1):
                if q0: A(q0.pop(0))
    assert not q0
    A.nop(5)
    for l in quad(46, 62): A(l)
    A(f"buffer_store_dwordx4 v[62:65], v7, s[8:11], s33 offen {stf}")
    stamp_(4)
    A(f"""s_add_u32 s36, s36, {0 if MODE == 3 else 262144}
    s_add_u32 s37, s37, {0 if MODE == 3 else 262144}
    s_add_u32 s38, s38, {0 if MODE == 2 else 131072}
    s_mov_b32 s82, s22
    s_add_u32 s22, s22, 1
    s_add_u32 s35, s35, {0 if MODE == 3 else 262144}
    s_mov_b32 s79, 0
    s_cmp_eq_u32 s78, 0
    s_cbranch_scc1 NORED{X}
    v_mov_b32 v34, 0x3f80
    v_mov_b32 v35, 0x3f800000
    v_cndmask_b32 v34, v34, v35, s[74:75]
    v_cndmask_b32 v30, 0, v34, s[66:67]
    v_cndmask_b32 v31, 0, v34, s[68:69]
    v_cndmask_b32 v32, 0, v34, s[70:71]
    v_cndmask_b32 v33, 0, v34, s[72:73]""")
    TO = f"s_add_u32 s79, s79, 1\ns_cmp_gt_u32 s79, 0x100000\ns_cbranch_scc1 CH_END"
    def issA(b):
        for i in range(4): A(f"buffer_load_dwordx4 {R('v',b+4*i)}, v0, s[8:11], s31 offen offset:{i*1024} sc1")
    def chkA(b):
        for i in range(4):
            A(f"s_waitcnt vmcnt({7-i})")
            A(f"{M32} v[34:37], v[30:33], {R('v',b+4*i)}, {'0' if i==0 else 'v[34:37]'}")
            for r in range(4):
                A(f"v_xor_b32 v14, s23, v{b}" if i+r == 0 else f"v_bitop3_b32 v14, v14, v{b+4*i+r}, s23 bitop3:0xf6")
        A(f"v_and_b32 v14, 1, v14\nv_cmp_ne_u32 vcc, 0, v14\ns_nop 0\ns_cbranch_vccz GOTA{X}")
    if DA: A(f"s_sleep {DA}")
    issA(38); A(f"s_sleep {DS}"); issA(54)
    A(f"POLLA{X}:")
    chkA(38); issA(38); chkA(54); issA(54); A(TO); A(f"s_branch POLLA{X}\nGOTA{X}:")
    for r in range(4): A(f"v_add_f32_dpp v{14+r}, v{34+r}, v{34+r} {DPP}")
    A(f"""v_cvt_pk_bf16_f32 v17, v16, v17
    v_cvt_pk_bf16_f32 v16, v14, v15
    v_and_or_b32 v16, v16, -2, s23
    s_mov_b64 exec, 0x00ff00ff
    buffer_store_dwordx2 v[16:17], v6, s[8:11], s30 offen {stf}
    s_mov_b64 exec, -1
    s_branch RED{X}
    NORED{X}:
    s_cmp_lt_u32 s20, 31
    s_cbranch_scc1 NOPF{X}""")
    if FLAGS: rdy(A, 38)
    A(f"""    NOPF{X}:
    s_sleep {DN}
    RED{X}:""")
    stamp_(5)
    ldW(0, 0, "k0"); ldW(1, 1, "k1")
    if DB: A(f"s_sleep {DB}")
    def issB(b, c):
        A(f"""buffer_load_dwordx4 {R('v',b)}, v9, s[8:11], s34 offen sc1
        buffer_load_dwordx4 {R('v',b+4)}, v9, s[8:11], s34 offen offset:1024 sc1
        buffer_load_dwordx2 {R('v',c,2)}, v10, s[8:11], s34 offen sc1""")
    def chkB(b, c, lab):
        A(f"s_waitcnt vmcnt(3)\nv_xor_b32 v38, s23, v{b}")
        for r in (b+2, b+4, b+6, c): A(f"v_bitop3_b32 v38, v38, v{r}, s23 bitop3:0xf6")
        A(f"v_and_b32 v38, 1, v38\nv_cmp_ne_u32 vcc, 0, v38\ns_nop 0\ns_cbranch_vccz {lab}")
    def wrB(b, c):
        A(f"ds_write_b128 v9, {R('v',b)}\nds_write_b128 v9, {R('v',b+4)} offset:1024\nds_write_b64 v10, {R('v',c,2)}")
    issB(14, 74)
    A("s_waitcnt vmcnt(3)\ns_mov_b32 s79, 0\nv_mov_b64 v[44:45], v[76:77]\nv_mov_b64 v[46:47], v[78:79]"); A(PA)
    for i in range(50, 66, 2): A(f"v_mov_b64 v[{i}:{i+1}], 0")
    if DS > 1: A(f"s_sleep {DS-1}")
    issB(66, 76)
    A(f"POLLB{X}:")
    chkB(14, 74, f"GOTB1{X}"); issB(14, 74); chkB(66, 76, f"GOTB2{X}"); issB(66, 76); A(TO); A(f"s_branch POLLB{X}\nGOTB1{X}:")
    wrB(14, 74); A(f"s_branch GOTB{X}\nGOTB2{X}:"); wrB(66, 76)
    A(f"""GOTB{X}:
    s_xor_b32 s23, s23, 1
    s_waitcnt lgkmcnt(0)
    buffer_load_dwordx4 v[14:17], v0, s[8:11], s36 offen sc1
    buffer_load_dwordx4 v[18:21], v0, s[8:11], s36 offen offset:1024 sc1
    buffer_store_dwordx4 v[44:47], v0, s[8:11], s39 offen {KVF}
    s_add_u32 s39, s39, 131072""")
    if prof:
        stamp_(6)
        lb = A.lab("NP")
        A(f"s_waitcnt lgkmcnt(0)\ns_cmp_lg_u32 s22, 40\ns_cbranch_scc1 {lb}")
        for i in range(7): A(f"v_mov_b32 v{38+i}, s{86+2*i}")
        A(f"""s_lshl_b32 s28, s20, 2
        s_add_u32 s28, s28, s21
        s_lshl_b32 s28, s28, 5
        s_add_u32 s28, s28, {TS}
        v_mov_b32 v46, 0
        buffer_store_dwordx4 v[38:41], v46, s[8:11], s28 offen
        buffer_store_dwordx4 v[42:45], v46, s[8:11], s28 offen offset:16
        s_waitcnt vmcnt(0)
        {lb}:""")
    A(f"s_branch STEP{X}")
```

```python
from mk import *
SE = int(sys.argv[2]) if len(sys.argv) > 2 else 8
chain.PFD = int(os.environ.get('PFD', 1)); chain.DA, chain.DB, chain.DN, chain.DS = eval(os.environ.get('D', '4,3,14,3')); SW = int(os.environ.get('SW', 13)); SA = int(sys.argv[6]) if len(sys.argv) > 6 else 8; NF = int(sys.argv[5]) if len(sys.argv) > 5 else 2; PFS = int(sys.argv[4]) if len(sys.argv) > 4 else 7
SC = int(sys.argv[3]) if len(sys.argv) > 3 else 8
def wait(A, off, sh, bits, full, srd='s[16:19]', io=0, SL=8, bar=True):
    l = A.lab("W")
    if bar: A(f"s_cmp_lg_u32 s21, 0\ns_cbranch_scc1 {l}_ok")
    A(f"""s_mov_b32 s79, 0
    {l}:
    buffer_load_dword v251, off, {srd}, s{off} offset:{io} sc1
    s_add_u32 s79, s79, 1
    s_cmp_gt_u32 s79, 0x40000
    s_cbranch_scc1 BG_END
    s_waitcnt vmcnt(0)
    v_readfirstlane_b32 s78, v251
    s_bfe_u32 s78, s78, {hex(sh | bits << 16)}
    s_cmp_eq_u32 s78, {full}
    s_cbranch_scc1 {l}_ok
    s_sleep {SL}
    s_branch {l}
    {l}_ok:""")
    if bar: A("s_barrier")
def signal(A, off, inc, bar=True, srd='s[16:19]', io=0):
    l = A.lab("S")
    A("s_waitcnt vmcnt(0)" + ("\ns_barrier" if bar else ""))
    A(f"""s_cmp_lg_u32 s21, 0
    s_cbranch_scc1 {l}
    v_mov_b32 v251, {inc}
    s_mov_b64 exec, 1
    buffer_atomic_add v251, off, {srd}, s{off} offset:{io} sc1
    s_mov_b64 exec, -1
    {l}:""")
def sr(A, idx, r, w=0):
    if DBG: A(f"s_sub_u32 s92, s77, {r}\ns_sub_u32 s90, s21, {w}\ns_or_b32 s92, s92, s90"); stamp(A, idx, "s92", 251)
def warm(A):
    l = A.lab("WARM")
    A("s_mov_b32 s5, 252"); wait(A, 5, 0, 8, 120)
    A("v_mbcnt_lo_u32_b32 v0, -1, 0\nv_mbcnt_hi_u32_b32 v0, -1, v0"); st.fpre(A)
def bg(A):
    st.pro(A)
    A("""s_sub_u32 s3, s3, 1
    s_lshr_b32 s4, s2, 3
    s_lshl_b32 s76, s3, 5
    s_add_u32 s76, s76, s4
    s_mul_i32 s77, s4, 7
    s_add_u32 s77, s77, s3
    s_mul_i32 s5, s76, 293
    s_lshr_b32 s5, s5, 11
    s_mul_i32 s6, s5, 7
    s_sub_u32 s6, s76, s6
    s_cmp_ge_u32 s77, 128
    s_cbranch_scc1 NOLN0
    s_mov_b32 s20, s77""")
    st.ln(A, False, "sc1")
    A("s_lshr_b32 s75, s77, 3\ns_lshl_b32 s75, s75, 2\ns_add_u32 s75, s75, 8"); signal(A, 75, 1, io=120); sr(A, 23, 0)
    A("NOLN0:"); a = st.StA(A, "sc1"); a.setup()
    A(f"""s_cmp_lt_u32 s6, {NF}
    s_cbranch_scc1 ALOOP
    s_sub_u32 s44, s6, {NF}
    s_lshl_b32 s44, s44, 2
    s_add_u32 s44, s44, s21
    s_mul_i32 s44, s44, {-(-1152//max(1, 28-4*NF))}
    v_add_u32 v247, s44, v0
    v_min_u32 v247, 0x47f, v247
    v_and_b32 v246, 1, v247
    v_lshrrev_b32 v247, 1, v247
    v_lshlrev_b32 v247, 13, v247
    v_lshl_add_u32 v247, v246, 7, v247
    s_lshl_b32 s44, s5, 8
    s_mov_b32 s75, 8""")
    if PFS: A("buffer_load_dword v248, v247, s[24:27], s44 offen\nbuffer_load_dword v249, v247, s[28:31], s44 offen\nbuffer_load_dword v250, v247, s[12:15], s44 offen")
    wait(A, 75, 4, 6, 32, SL=32)
    A("ALOOP:\ns_lshl_b32 s75, s6, 2\ns_add_u32 s75, s75, 8\ns_lshl_b32 s20, s6, 5\ns_add_u32 s20, s20, s5")
    a.item("sc1", lambda: (wait(A, 75, 0, 4, 8, io=120, SL=SA), stamp(A, 26, "s20", 251))); signal(A, 75, 16); stamp(A, 24, "s20", 251); sr(A, 25, 0)
    A("s_add_u32 s6, s6, 7\ns_cmp_lt_u32 s6, 16\ns_cbranch_scc1 ALOOP\ns_sub_u32 s76, s76, s3\ns_cmp_lt_u32 s77, 216\ns_cbranch_scc1 HASE")
    W = "s[8:11]"
    A("s_mov_b32 s6, 0"); wait(A, 6, 0, 8, 32)
    A(f"""LLOOP:
    s_lshl_b32 s5, s6, 2
    s_add_u32 s5, s5, s21
    s_lshl_b32 s20, s5, 3
    s_add_u32 s20, s20, s77
    s_sub_u32 s20, s20, 216
    s_lshl_b32 s75, s5, 7
    s_add_u32 s75, s75, {FL+4096}""")
    st.ln(A, True, "sc1", part=lambda: (wait(A, 75, 0, 8, 24, W, 0, 2, False), sr(A, 30, 216, 3)))
    A(f"""s_lshl_b32 s75, s6, 10
    s_add_u32 s75, s75, {FL+12288}
    v_lshlrev_b32 v2, 7, v0
    v_mov_b32 v3, 1
    s_waitcnt vmcnt(0)
    s_mov_b64 exec, 0xff
    buffer_atomic_add v3, v2, s[8:11], s75 offen sc1
    s_mov_b64 exec, -1""")
    sr(A, 31, 216, 3)
    A("s_add_u32 s6, s6, 1\ns_cmp_lt_u32 s6, 16\ns_cbranch_scc1 LLOOP\ns_branch CHW\nHASE:")
    A("s_mul_i32 s68, s76, 171\ns_lshr_b32 s68, s68, 10\ns_mul_i32 s69, s68, 6\ns_sub_u32 s69, s76, s69")
    A("s_mov_b32 s95, 12\ns_mov_b32 s98, 2\ns_cmp_ge_u32 s77, 192\ns_cbranch_scc1 NOWO\ns_and_b32 s74, s77, 7\ns_lshr_b32 s93, s77, 5\ns_cmp_ge_u32 s77, 96\ns_cselect_b32 s98, 1, 0\ns_add_u32 s95, s98, 14\ns_mul_i32 s44, s98, 3\ns_sub_u32 s93, s93, s44"); st.woinit(A)
    A("s_cmp_lt_u32 s77, 96\ns_cbranch_scc1 WODONE\nNOWO:\ns_sub_u32 s7, s77, 96\ns_lshl_b32 s7, s7, 2\ns_add_u32 s7, s7, s21"); st.w2t(A)
    A("s_mov_b32 s75, 252"); signal(A, 75, 1); A("WODONE:")
    def body(chunk):
        A("s_mov_b32 s6, 0"); wait(A, 6, 0, 8, 32)
        A(f"""s_mov_b32 s94, 0
        s_cmp_ge_u32 s77, 192
        s_cbranch_scc1 ILOOP
        v_lshlrev_b32 v2, 2, v0
        s_mov_b32 s79, 0
        AW:
        buffer_load_dword v3, v2, s[16:19], 0 offen offset:8 sc1
        s_add_u32 s79, s79, 1
        s_cmp_gt_u32 s79, 0x40000
        s_cbranch_scc1 BG_END
        s_waitcnt vmcnt(0)
        v_and_b32 v3, 0x200, v3
        v_cmp_ne_u32 vcc, 0, v3
        s_sleep 32
        s_and_b32 s5, vcc_lo, 0xffff
        s_cmp_lg_u32 s5, 0xffff
        s_cbranch_scc1 AW
        ILOOP:
        s_cmp_eq_u32 s6, 16
        s_cbranch_scc1 DOE
        s_and_b32 s5, s6, 1
        s_cmp_lg_u32 s5, s98
        s_cbranch_scc1 DOW
        s_lshl_b32 s5, s6, 2
        s_add_u32 s75, s5, 8
        s_bfe_u32 s22, s77, 0x20003
        s_add_u32 s22, s22, s5
        s_lshl_b32 s23, s74, 2
        s_add_u32 s23, s23, s21""")
        def wc():
            A(f"""s_lshl_b32 s5, s23, 7
            s_add_u32 s5, s5, {FL}
            v_mov_b32 v4, 0
            s_mov_b32 s79, 0
            WC:
            buffer_load_ubyte v5, v4, s[8:11], s5 offen sc1
            s_add_u32 s79, s79, 1
            s_cmp_gt_u32 s79, 0x40000
            s_cbranch_scc1 BG_END
            s_waitcnt vmcnt(0)
            v_cmp_ge_u32 vcc, s22, v5
            s_nop 1
            s_cbranch_vccz WC_ok
            v_readfirstlane_b32 s78, v5
            s_add_u32 s78, s78, 1
            s_cmp_ge_u32 s78, s22
            s_cbranch_scc1 WC_s
            s_sleep 40
            WC_s:
            s_sleep {SC}
            s_branch WC
            WC_ok:""")
        st.stC(A, "sc1", "sc1", sf="sc1", wait=wc)
        A(f"s_lshl_b32 s75, s22, 7\ns_add_u32 s75, s75, {FL+4096}"); signal(A, 75, 1, True, W, 0)
        A("DOW:\ns_cmp_lg_u32 s6, s95\ns_cbranch_scc1 DOE"); warm(A)
        A(f"DOE:\ns_cmp_lt_u32 s6, {SW}\ns_cselect_b32 s5, 2, 1\ns_add_u32 s5, s5, s94\ns_cmp_gt_u32 s5, s6\ns_cbranch_scc1 NOE\ns_lshl_b32 s5, s94, 3\ns_add_u32 s5, s5, s3\ns_lshl_b32 s5, s5, 7\ns_add_u32 s5, s5, {FL+12288}")
        chunk(lambda: (wait(A, 5, 0, 8, 32, W, 0, SE),))
        A("s_add_u32 s94, s94, 1\ns_branch DOE\nNOE:\ns_add_u32 s6, s6, 1\ns_cmp_lt_u32 s6, 17\ns_cbranch_scc1 ILOOP")
    st.stE(A, body, "sc1")
    A(f"""s_mul_i32 s75, s68, 57
    s_lshr_b32 s75, s75, 9
    s_lshl_b32 s75, s75, 1
    s_cmp_ge_u32 s69, 3
    s_addc_u32 s75, s75, 0
    s_lshl_b32 s75, s75, 9
    s_add_u32 s75, s75, {FL+28672}
    v_lshlrev_b32 v2, 7, v0
    v_mov_b32 v3, 1
    s_waitcnt vmcnt(0)
    s_barrier
    s_cmp_lg_u32 s21, 0
    s_cbranch_scc1 DOF
    s_mov_b64 exec, 15
    buffer_atomic_add v3, v2, s[8:11], s75 offen sc1
    s_mov_b64 exec, -1""")
    A(f"DOF:\ns_lshl_b32 s75, s84, 1\ns_lshr_b32 s5, s83, 1\ns_add_u32 s75, s75, s5\ns_lshl_b32 s75, s75, 2\ns_and_b32 s5, s82, 3\ns_add_u32 s75, s75, s5\ns_lshl_b32 s75, s75, 7\ns_add_u32 s75, s75, {FL+28672}")
    st.stF2(A, lambda: (wait(A, 75, 0, 8, 27, W, 0, 2), stamp(A, 28, "s2", 251)), lambda: (stamp(A, 22, "s2", 251), signal(A, 75, 1, True, W), wait(A, 75, 0, 8, 4, W, 0, 1)))
    A("s_waitcnt vmcnt(0)"); stamp(A, 29, "s2", 251)
    A("BG_END:")
def build2():
    A = Asm(); K = []; n = P + "_kernel"; chain.FLAGS = True
    A(f".globl {n}\n.p2align 8\n.type {n},@function\n{n}:\ns_cmp_ge_u32 s2, 256\ns_cbranch_scc1 K1E\ns_and_b32 s3, s2, 7\ns_cmp_lg_u32 s3, 0\ns_cbranch_scc1 BG")
    chain.gen_chain(A, os.environ.get("PROF")); A("CHW:"); warm(A); A("s_branch DOF\nK1E:\ns_endpgm\nBG:"); bg(A); A("s_waitcnt vmcnt(0)\ns_endpgm")
    K.append((n, 256, 163840, 512, 256))
    return fin(A, K)
if __name__ == "__main__":
    open(sys.argv[1] if len(sys.argv) > 1 else f"cdna_kernels/{P}.s", "w").write(build2())
```

```python
from asmlib import *
PFD = 1
DS = 3
DA, DB, DN, MODE, KVF = 0, 0, 8, 0, ''
LM, LS, LO = 147456, 156672, 161792
def wreg(name, t):
    if name == "q0": return R("a", 8*t, 8)
    if name == "q1": return R("a", 72+8*t, 8)
    if name == "k0": return R("a", 144+8*t, 8)
    if name == "v0": return R("a", 216+8*t, 8) if t < 5 else R("v", 224+8*(t-5), 8)
def wsub(name, t, q):
    base = {"q0": ("a", 8*t), "q1": ("a", 72+8*t), "k0": ("a", 144+8*t),
            "v0": ("a", 216+8*t) if t < 5 else ("v", 224+8*(t-5)),
            "k1": ("v", 152+8*t), "v1": ("v", 80+8*t), "o0": ("v", 8+8*t), "o1": ("v", 152+8*t)}[name]
    return R(base[0], base[1]+2*q, 2)
def gen_chain(A, prof=False, flags=False):
    A(f"""
    s_lshr_b32 s20, s2, 3
    v_lshrrev_b32 v1, 6, v0
    v_and_b32 v0, 63, v0
    s_load_dwordx4 s[40:43], s[0:1], 16
    s_load_dwordx4 s[44:47], s[0:1], 32
    s_load_dwordx2 s[48:49], s[0:1], 8
    s_load_dwordx4 s[52:55], s[0:1], 104
    v_readfirstlane_b32 s21, v1
    s_getreg_b32 s24, hwreg(HW_REG_XCC_ID, 0, 4)
    s_waitcnt lgkmcnt(0)""")
    A.srd(8, 54, WSZ); A.srd(16, 52, 256)
    stamp(A, 18, "s2", 1)
    A(f"""
    v_lshrrev_b32 v1, 3, v0
    v_lshlrev_b32 v1, 13, v1
    v_bfe_u32 v2, v0, 1, 2
    v_bfe_u32 v3, v0, 4, 1
    v_xor_b32 v2, v2, v3
    v_lshlrev_b32 v2, 5, v2
    v_and_b32 v3, 1, v0
    v_lshlrev_b32 v3, 4, v3
    v_add3_u32 v1, v1, v2, v3
    v_xor_b32 v2, 64, v1
    v_lshlrev_b32 v3, 4, v0
    s_lshl_b32 s25, s21, 10
    s_lshl_b32 s26, s21, 16
    s_lshl_b32 s27, s20, 8
    s_add_u32 s26, s26, s27
    s_mul_i32 s27, s20, 147456
    s_add_u32 s27, s27, s25""")
    chunks = [("k1",42,1),("v1",44,1),("k0",42,0),("v0",44,0),("q0",40,0),("q1",40,1),("o0",46,0),("o1",46,1)]
    def issue(c):
        nm, b, j = chunks[c]
        A.srd(12, b, 4718592)
        for ii in range(18):
            A(f"s_add_u32 m0, s25, {(c&1)*73728 + ii*4096}")
            if nm[0] == "o":
                A(f"s_add_u32 s28, s27, {j*73728 + ii*4096}")
                A.m(f"buffer_load_dwordx4 v3, s[12:15], s28 offen lds", f"c{c}")
            else:
                A(f"s_add_u32 s28, s26, {ii*4*65536 + j*128}")
                A.m(f"buffer_load_dwordx4 v{1+(ii&1)}, s[12:15], s28 offen lds", f"c{c}")
    issue(0); issue(1)
    A(f"""
    v_mov_b32 v8, 0
    v_mov_b32 v9, 0
    v_mov_b32 v10, 0
    v_mov_b32 v11, 0
    v_lshrrev_b32 v4, 3, v0
    v_lshlrev_b32 v4, 12, v4
    v_and_b32 v5, 7, v0
    v_lshl_add_u32 v4, v5, 4, v4
    s_lshl_b32 s28, s20, 7
    s_add_u32 s28, s28, {HA}""")
    for i in range(9):
        A(f"s_add_u32 s29, s28, {i*32768}")
        A.m(f"buffer_store_dwordx4 v[8:11], v4, s[8:11], s29 offen sc1")
    A(f"s_mov_b32 s29, {HB}")
    for i in range(9):
        A.m(f"buffer_store_dwordx4 v[8:11], v3, s[8:11], s29 offen offset:{(i%4)*1024} sc1")
        if i % 4 == 3: A(f"s_add_u32 s29, s29, 4096")
    if FLAGS:
        A(f"s_and_b32 s29, s20, 15\ns_lshl_b32 s29, s29, 2\ns_add_u32 s29, s29, s21\ns_lshl_b32 s29, s29, 10\ns_add_u32 s29, s29, {FL}")
        for i in range(1): A.m(f"buffer_store_dwordx4 v[8:11], v3, s[8:11], s29 offen offset:{i*1024} sc1")
    A(f"""
    v_bfe_u32 v6, v0, 4, 1
    v_bfe_u32 v7, v0, 5, 1
    v_bfe_u32 v8, v0, 2, 2
    v_lshlrev_b32 v4, 5, v6
    v_lshl_add_u32 v4, v7, 3, v4
    v_add_u32 v4, v4, v8
    v_lshlrev_b32 v4, 7, v4
    v_lshrrev_b32 v9, 1, v8
    v_lshl_add_u32 v10, v6, 1, v9
    v_xor_b32 v10, s21, v10
    v_lshl_add_u32 v4, v10, 5, v4
    v_and_b32 v10, 3, v0
    v_lshl_add_u32 v4, v10, 3, v4
    v_lshlrev_b32 v5, 4, v7
    v_lshl_add_u32 v5, v6, 2, v5
    v_lshl_add_u32 v5, v9, 3, v5
    v_and_b32 v8, 1, v8
    v_add_u32 v5, v5, v8
    v_mul_u32_u24 v5, 1152, v5
    v_lshl_add_u32 v5, v10, 3, v5
    s_mul_i32 s28, s21, 288
    v_add_u32 v5, s28, v5""")
    for c in range(8):
        nm = chunks[c][0]
        if c == 0:
            A("s_waitcnt vmcnt(0)\ns_barrier")
            lb = A.lab("NOSIG")
            A(f"""s_cmp_lg_u32 s21, 0
            s_cbranch_scc1 {lb}
            s_lshl_b32 s28, 1, s24
            v_mov_b32 v6, s28
            v_mov_b32 v7, 0
            s_mov_b64 exec, 1
            buffer_atomic_or v6, v7, s[16:19], 0 offen offset:4 sc0
            s_waitcnt vmcnt(0)
            v_mov_b32 v6, 1
            buffer_atomic_add v6, v7, s[16:19], 0 offen
            s_waitcnt vmcnt(0)
            s_mov_b64 exec, -1
            {lb}:""")
        else:
            A.wm(f"c{c}"); A("s_barrier")
        if c == 7:
            A(f"s_mul_i32 s28, s21, 18432\nv_add_u32 v6, s28, v3")
            for t in range(18): A(f"ds_write_b128 v6, {R('v',152+4*t)} offset:{t*1024}")
            A("s_waitcnt lgkmcnt(0)")
        if nm[0] == "o":
            A(f"v_add_u32 v6, {(c&1)*73728}, v5")
            for q in range(4):
                A(f"ds_read_b64_tr_b16 {wsub(nm,8,q)}, v6 offset:{(32*(q>>1)+2*(q&1))*1152+32*8}")
            A(f"""v_bfe_u32 v7, v0, 5, 1
            v_mul_u32_u24 v7, {8*1152}, v7
            v_sub_u32 v6, v6, v7
            v_bfe_u32 v7, v0, 3, 1
            v_mul_u32_u24 v7, {8*1152-32}, v7
            v_sub_u32 v6, v6, v7""")
            for T in range(8):
                for q in range(4):
                    A(f"ds_read_b64_tr_b16 {wsub(nm,T,q)}, v6 offset:{(32*(T&1)+16*(q>>1)+2*(q&1))*1152+64*(T>>1)}")
        else:
            A(f"v_add_u32 v6, {(c&1)*73728}, v4\nv_add_u32 v7, {(c&1)*73728+32768}, v4")
            for t in range(9):
                for q in range(4):
                    o = (64*t+16*(q>>1)+4*(q&1))*128
                    A(f"ds_read_b64_tr_b16 {wsub(nm,t,q)}, v{6 if t<4 else 7} offset:{o if t<4 else o-32768}")
        A("s_waitcnt lgkmcnt(0)")
        if c < 6:
            A("s_barrier"); issue(c+2)
    A(f"s_barrier\ns_mul_i32 s28, s21, 18432\ns_add_u32 s28, s28, 73728\nv_add_u32 v6, s28, v3")
    for t in range(18): A(f"ds_write_b128 v6, {R('v',80+4*t)} offset:{t*1024}")
    A("s_waitcnt lgkmcnt(0)")
    for i in range(72): A(f"v_mov_b32 v{80+i}, v{8+i}")
    A.srd(12, 48, 9216)
    A(f"s_lshl_b32 s28, s21, 6\nv_add_u32 v6, s28, v0")
    for i in range(3):
        A(f"v_add_u32 v7, {i*256}, v6\nv_min_u32 v7, 575, v7\nv_lshlrev_b32 v8, 1, v7\nv_lshlrev_b32 v7, 4, v7\nv_add_u32 v7, {LM}, v7")
        for r in range(8):
            A(f"buffer_load_ushort v{20+r}, v8, s[12:15], 0 offen offset:{(r%3)*1152}")
            if r % 3 == 2: A("v_add_u32 v8, 3456, v8")
        A("s_waitcnt vmcnt(0)")
        for r in range(4): A(f"v_lshl_or_b32 v{12+r}, v{21+2*r}, 16, v{20+2*r}")
        A("ds_write_b128 v7, v[12:15]\ns_waitcnt lgkmcnt(0)")
    A(f"""
    v_mov_b32 v14, v0
    v_and_b32 v15, 15, v14
    v_lshrrev_b32 v16, 4, v14
    v_lshlrev_b32 v17, 4, v14
    v_add_u32 v0, {LS}, v17
    s_mul_i32 s28, s21, 18432
    v_add_u32 v1, s28, v17
    v_bfe_u32 v18, v14, 3, 1
    v_lshlrev_b32 v2, 2, v18
    v_bfe_u32 v18, v14, 2, 1
    v_add_u32 v2, v2, v18
    v_bfe_u32 v18, v14, 1, 1
    v_lshl_add_u32 v2, v18, 1, v2
    v_lshl_add_u32 v2, v16, 3, v2
    v_lshlrev_b32 v2, 4, v2
    v_and_b32 v18, 1, v14
    v_lshl_add_u32 v2, v18, 3, v2
    v_add_u32 v2, {LM}, v2
    s_mul_i32 s28, s21, 1280
    v_add_u32 v3, s28, v0
    v_and_b32 v4, 31, v14
    v_lshlrev_b32 v4, 3, v4
    v_add_u32 v4, {LS+1024}, v4
    v_add_u32 v5, s28, v4
    v_and_b32 v18, 1, v16
    v_lshrrev_b32 v19, 1, v16
    v_lshlrev_b32 v6, 4, v15
    v_lshl_add_u32 v6, v18, 3, v6
    v_lshl_add_u32 v6, v19, 7, v6
    s_lshl_b32 s28, s21, 8
    s_add_u32 s28, s28, {LO}
    v_add_u32 v6, s28, v6
    s_mul_i32 s29, s20, 3
    s_add_u32 s29, s29, s21
    s_lshl_b32 s30, s29, 7
    s_add_u32 s30, s30, {HB}
    s_sub_u32 s30, s30, s28
    s_lshl_b32 s31, s29, 12
    s_add_u32 s31, s31, {HA-LS}
    v_lshl_add_u32 v7, v18, 1, v19
    v_lshl_add_u32 v7, v7, 4, v15
    s_mul_i32 s28, s21, 144
    v_add_u32 v7, s28, v7
    s_add_u32 s28, s28, 128
    v_add_u32 v8, s28, v15
    v_lshrrev_b32 v20, 3, v7
    v_and_b32 v7, 7, v7
    v_lshlrev_b32 v7, 4, v7
    v_lshl_add_u32 v7, v20, 12, v7
    v_lshrrev_b32 v20, 3, v8
    v_and_b32 v8, 7, v8
    v_lshlrev_b32 v8, 4, v8
    v_lshl_add_u32 v8, v20, 12, v8
    v_lshl_add_u32 v8, v18, 3, v8
    v_lshl_add_u32 v8, v19, 2, v8
    s_lshl_b32 s32, s20, 7
    s_add_u32 s32, s32, {HA}
    s_add_u32 s33, s32, 32768
    s_mul_i32 s28, s21, 2304
    s_add_u32 s28, s28, {LM}
    v_add_u32 v9, s28, v17
    s_add_u32 s28, s28, 2048
    v_and_b32 v10, 31, v14
    v_lshl_add_u32 v10, v10, 3, s28
    s_mov_b32 s34, {HB-LM}
    s_mov_b32 s60, 0xff00ff00
    s_mov_b32 s61, 0xff00ff00
    s_mov_b32 s62, 0x00ff00ff
    s_mov_b32 s63, 0x00ff00ff
    s_mov_b32 s64, -1
    s_mov_b32 s65, 0
    v_mov_b32 v11, 0x4444
    v_mov_b32 v18, 0xeeee
    v_cndmask_b32 v11, v11, v18, s[60:61]
    v_and_b32 v18, 7, v15
    v_and_b32 v19, 1, v16
    v_lshlrev_b32 v19, 2, v19
    v_sub_u32 v18, v18, v19
    v_mov_b32 v12, 0
    v_mov_b32 v13, 0
    v_mov_b32 v20, 0x3f80
    v_mov_b32 v21, 0x3f800000
    v_cmp_eq_u32 vcc, 0, v18
    s_nop 1
    v_cndmask_b32 v12, v12, v20, vcc
    v_cmp_eq_u32 vcc, 1, v18
    s_nop 1
    v_cndmask_b32 v12, v12, v21, vcc
    v_cmp_eq_u32 vcc, 2, v18
    s_nop 1
    v_cndmask_b32 v13, v13, v20, vcc
    v_cmp_eq_u32 vcc, 3, v18
    s_nop 1
    v_cndmask_b32 v13, v13, v21, vcc
    v_and_b32 v18, 7, v15
    v_lshrrev_b32 v18, 1, v18
    v_cmp_eq_u32 s[66:67], 0, v18
    v_cmp_eq_u32 s[68:69], 1, v18
    v_cmp_eq_u32 s[70:71], 2, v18
    v_cmp_eq_u32 s[72:73], 3, v18
    s_mov_b32 s74, 0xaaaaaaaa
    s_mov_b32 s75, 0xaaaaaaaa
    s_lshl_b32 s35, s20, 13
    s_lshl_b32 s28, s21, 11
    s_add_u32 s36, s35, s28
    s_add_u32 s37, s36, {VF-LS}
    s_add_u32 s36, s36, {KF-LS}
    s_add_u32 s35, s35, {KF+PFD*262144-8*LS}
    s_lshl_b32 s28, s21, 8
    s_add_u32 m0, s28, {LO}
    s_mov_b32 s84, 0xffff0000
    s_mov_b32 s85, s84
    s_lshl_b32 s38, s20, 12
    s_lshl_b32 s28, s21, 10
    s_add_u32 s38, s38, s28
    s_add_u32 s39, s38, {VM-LS}
    s_add_u32 s38, s38, {KM-LS}
    s_mov_b32 s76, {f2u(128**-0.5*1.4426950408889634)}
    s_mov_b32 s77, 0x3f803f80
    s_mov_b32 s22, 0
    s_mov_b32 s23, 1
    s_cmp_lt_u32 s20, 24
    s_cselect_b32 s78, 1, 0
    s_cmp_lt_u32 s21, 3
    s_cselect_b32 s78, s78, 0
    v_mov_b32 v20, 0
    s_mov_b32 s79, 0""")
    lw = A.lab("HS")
    A(f"""{lw}:
    buffer_load_dwordx2 v[18:19], v20, s[16:19], 0 offen sc1
    s_add_u32 s79, s79, 1
    s_cmp_gt_u32 s79, 0x100000
    s_cbranch_scc1 CH_END
    s_waitcnt vmcnt(0)
    v_readfirstlane_b32 s28, v18
    v_readfirstlane_b32 s29, v19
    s_cmp_lt_u32 s28, 32
    s_cbranch_scc1 {lw}
    s_bcnt1_i32_b32 s29, s29""")
    if FLAGS:
        A(f"s_lshl_b32 s81, s20, 7\ns_cmp_eq_u32 s21, 3\ns_cselect_b64 s[40:41], 1, 0\ns_add_u32 s81, s81, {FL}\ns_mov_b32 s80, 0"); stamp(A, 19, "s2", 18); rdy(A, 18); stamp(A, 20, "s2", 18)
    A(f"""s_cmp_eq_u32 s29, 1
    s_cbranch_scc0 CH_SLOW""")
    pass
    loop(A, "F", "", prof)
    A("CH_SLOW:")
    loop(A, "S", "sc1", False)
    A(f"CH_LAST:\nbuffer_store_dwordx4 v[76:79], v0, s[8:11], s39 offen {KVF}\nCH_END:")
    if FLAGS: A("s_waitcnt vmcnt(0)\ns_barrier\nv_mov_b32 v14, s22\nv_add_u32 v14, 1, v14\nbuffer_store_byte v14, off, s[8:11], s81 sc1")
    stamp(A, 21, "s2", 14)

FLAGS = False
def rdy(A, v):
    l = A.lab("RDY")
    A(f"""s_mov_b32 s79, 0
    {l}:
    s_add_u32 s28, s22, {PFD}
    s_cmp_lt_u32 s28, s80
    s_cbranch_scc1 {l}_ok
    v_mbcnt_lo_u32_b32 v{v}, -1, 0
    v_lshlrev_b32 v{v}, 2, v{v}
    buffer_load_dword v{v}, v{v}, s[16:19], 0 offen offset:8 sc1
    s_add_u32 s79, s79, 1
    s_cmp_gt_u32 s79, 0x100000
    s_cbranch_scc1 CH_END
    s_waitcnt vmcnt(0)
    v_and_b32 v{v}, 0x200, v{v}
    v_cmp_ne_u32 vcc, 0, v{v}
    s_nop 1
    s_and_b32 s28, vcc_lo, 0xffff
    s_ff0_i32_b32 s28, s28
    s_lshl_b32 s80, s28, 2
    s_cmp_eq_u32 s28, 16
    s_cselect_b32 s80, 0x3e8, s80
    s_cmp_lg_u32 s80, 0
    s_cbranch_scc1 {l}
    s_sleep 24
    s_branch {l}
    {l}_ok:""")
def loop(A, X, stf, prof):
    PA = f"v_mov_b32 v40, {LS+VF-KF + (262144 if os.environ.get('VN') else 0)}\nv_mov_b32 v41, {LS+(262144 if not os.environ.get('VO') else VF-KF)}\nv_cndmask_b32 v40, v40, v41, s[84:85]\nv_and_b32 v39, 0xf0, v0\nv_lshl_add_u32 v39, v39, 3, v40"
    PL = "buffer_load_dword v39, s[8:11], s36 offen sc1 lds"
    NP = 0 if os.environ.get("NOPF") else 1
    if not NP: PA = PL = "s_nop 0"
    SM = "v_smfmac_f32_16x16x64_bf16"
    M32 = "v_mfma_f32_16x16x32_bf16"; M16 = "v_mfma_f32_16x16x16_bf16"
    DPP = "row_ror:8 row_mask:0xf bank_mask:0xf"
    def stamp_(i):
        if prof: A(f"s_memtime s[{86+2*i}:{87+2*i}]")
    def ldA(t, slot, tag):
        A.d(f"ds_read_b64_tr_b16 v[{slot}:{slot+1}], v2 offset:{t*1024}", tag)
        A.d(f"ds_read_b64_tr_b16 v[{slot+2}:{slot+3}], v2 offset:{t*1024+512}", tag)
    def ldW(t, b, tag):
        A.d(f"ds_read_b128 {R('v',22+8*b)}, v1 offset:{t*2048}", tag)
        A.d(f"ds_read_b128 {R('v',26+8*b)}, v1 offset:{t*2048+1024}", tag)
    def pre():
        for i in range(50, 74): A(f"v_mov_b32 v{i}, 0")
        ldW(0, 0, "k0"); ldW(1, 1, "k1")
    pre()
    A.m(f"buffer_load_dwordx4 v[14:17], v0, s[8:11], s36 offen sc1", "kx")
    A.m(f"buffer_load_dwordx4 v[18:21], v0, s[8:11], s36 offen offset:1024 sc1", "kx")
    A(f"s_mov_b32 s83, 0\ns_mov_b32 s82, 0\n{PA}")
    A(f"s_waitcnt lgkmcnt(0)\nSTEP{X}:\ns_barrier\n{PL}\nbuffer_store_dwordx4 v[44:47], v0, s[8:11], s39 offen {KVF}\ns_add_u32 s39, s39, s83")
    stamp_(0)
    A.ds = []; A.vm = ["kx", None] + [None]*NP
    for t in range(3): ldA(t, 38+4*t, f"a{t}")
    for t in range(9):
        sl = R("v", 38+4*(t%3)); u = t-1
        A.wd(f"a{t}")
        A(f"{SM} v[50:53], {sl}, {wreg('q0',t)}, v11")
        if 1 <= t <= 7: ldW(t+1, u&1, f"k{t+1}")
        if t == 8: ldW(0, 1, "p0")
        A(f"{SM} v[54:57], {sl}, {wreg('q1',t)}, v11")
        if 1 <= t <= 6: ldA(t+2, 38+4*(u%3), f"a{t+2}")
        if t >= 7: ldA(t-7, 38+4*(u%3), f"p{t-7}")
        A(f"{SM} v[58:61], {sl}, {wreg('k0',t)}, v11")
        if t == 7: A("v_add_u32 v1, 73728, v1")
        if t == 3: A(f"s_waitcnt vmcnt({3+NP})")
        if t >= 2: A.wd(f"k{t}")
        A(f"{SM} v[62:65], {sl}, {R('v',22+8*(t&1),8)}, v11")
        if 3 <= t <= 6: A(f"v_mov_b64 v[{66+2*(t-3)}:{67+2*(t-3)}], 0")
    ldW(1, 0, "p1")
    stamp_(1)
    def pair(t, fill=""):
        sl = R("v", 38+4*(t&1))
        A.wd(f"p{t}")
        A(f"{SM} v[70:73], {sl}, {R('v',22+8*((t+1)&1),8)}, v11")
        if t+2 < 9: ldW(t+2, (t+1)&1, f"p{t+2}")
        if fill: A(fill)
        A(f"{SM} v[66:69], {sl}, {wreg('v0',t)}, v11")
        if t+2 < 9: ldA(t+2, 38+4*(t&1), f"p{t+2}")
    def pld(t): pass
    pa = lambda d, a: A(f"v_pk_add_f32 {R('v',d,2)}, {R('v',d,2)}, {R('v',a,2)}")
    pair(0); pld(2); A.nop(2)
    pk = [74, 76, 78, 46]
    for i in range(4):
        A(f"v_cvt_pk_bf16_f32 v{pk[i]}, v{50+4*i}, v{51+4*i}\nv_cvt_pk_bf16_f32 v{pk[i]+1}, v{52+4*i}, v{53+4*i}")
    for i in range(4):
        A(f"{M16} {R('v',50+4*i)}, {R('v',pk[i],2)}, v[12:13], 0")
    pair(1); pld(3); A.nop(1)
    pk = [74, 76, 46, 48]
    for i in range(4):
        A(f"v_cvt_pk_bf16_f32 v{pk[i]}, v{50+4*i}, v{51+4*i}\nv_cvt_pk_bf16_f32 v{pk[i]+1}, v{52+4*i}, v{53+4*i}")
    A.wm("kx")
    A(f"{M32} v[54:57], v[14:17], v[74:77], 0")
    A(f"{M32} v[58:61], v[18:21], v[74:77], 0")
    A(f"{M32} v[50:53], v[46:49], v[74:77], 0")
    A.m(f"buffer_load_dwordx4 v[14:17], v0, s[8:11], s37 offen sc1", "vx")
    A.m(f"buffer_load_dwordx4 v[18:21], v0, s[8:11], s37 offen offset:1024 sc1", "vx")
    pair(2); pld(4)
    for r in range(4): A(f"v_cndmask_b32 v{62+r}, v{54+r}, v{58+r}, s[60:61]")
    for r in range(2): A(f"v_cndmask_b32 v{78+r}, v{50+r}, v{52+r}, s[60:61]")
    A.d("ds_write_b128 v3, v[62:65]", "sw"); A.d("ds_write_b64 v5, v[78:79]", "sw")
    A.m(f"buffer_store_dwordx4 v[46:49], v0, s[8:11], s38 offen {KVF}")
    if FLAGS: A("v_mov_b32 v54, s82\ns_mov_b64 exec, s[40:41]"); A.m("buffer_store_byte v54, off, s[8:11], s81 sc1")
    A("s_mov_b64 exec, -1")
    pair(3); A.wd("sw"); A("s_barrier")
    stamp_(2)
    mr = [74, 76, 78, 46]
    for i in range(4):
        A.d(f"ds_read_b128 {R('v',50+4*i)}, v0 offset:{i*1280}", f"s{i}")
        A.d(f"ds_read_b64 {R('v',mr[i],2)}, v4 offset:{i*1280}", f"s{i}")
    pld(5); pair(4); pld(6)
    A.wd("s1")
    pa(50, 54); pa(52, 56); pa(74, 76)
    A.wd("s3")
    pa(58, 62); pa(60, 64); pa(78, 46); pa(50, 58); pa(52, 60); pa(74, 78)
    A("v_max3_f32 v54, v50, v51, v52\nv_max3_f32 v54, v54, v53, v74")
    pair(5, "v_max_f32 v54, v54, v75")
    A(f"v_max_f32_dpp v54, v54, v54 {DPP}\nv_mov_b32 v55, v54")
    A("v_mov_b32 v60, s77\nv_mov_b32 v61, s77")
    A("v_permlane16_swap_b32 v54, v55\nv_max_f32 v54, v54, v55")
    pair(6, "v_mov_b32 v55, v54")
    A("v_permlane32_swap_b32 v54, v55\nv_max_f32 v54, v54, v55\nv_mul_f32 v54, s76, v54")
    pair(7, "\n".join(f"v_pk_fma_f32 {R('v',r,2)}, {R('v',r,2)}, s[76:77], v[54:55] op_sel_hi:[1,0,0] neg_lo:[0,0,1] neg_hi:[0,0,1]" for r in (50, 52, 74)))
    for r in (50, 51, 52, 53, 74, 75): A(f"v_exp_f32 v{r}, v{r}")
    pair(8, "v_mov_b64 v[62:63], v[60:61]\nv_cndmask_b32 v64, 0, v60, s[64:65]\nv_cndmask_b32 v65, 0, v60, s[64:65]")
    A("v_cvt_pk_bf16_f32 v54, v50, v51\nv_cvt_pk_bf16_f32 v55, v52, v53\nv_cvt_pk_bf16_f32 v58, v74, v75")
    A(f"v_mov_b32_dpp v56, v54 {DPP}\nv_mov_b32_dpp v57, v55 {DPP}\nv_mov_b32_dpp v59, v58 {DPP}\nv_subrev_u32 v1, 73728, v1")
    A.wm("vx")
    A(f"{M32} v[30:33], v[60:63], v[54:57], 0")
    A("v_cvt_pk_bf16_f32 v78, v70, v71\nv_cvt_pk_bf16_f32 v79, v72, v73")
    A(f"{M32} v[22:25], v[14:17], v[54:57], 0")
    A("v_cvt_pk_bf16_f32 v76, v66, v67\nv_cvt_pk_bf16_f32 v77, v68, v69")
    A(f"{M32} v[26:29], v[18:21], v[54:57], 0")
    A(f"{M16} v[30:33], v[64:65], v[58:59], v[30:33]")
    A(f"{M16} v[22:25], v[76:77], v[58:59], v[22:25]")
    A(f"{M16} v[26:29], v[78:79], v[58:59], v[26:29]")
    A(f"""s_cmp_eq_u32 s22, 63
    s_cbranch_scc1 CH_LAST
    s_nop 0
    v_lshrrev_b32 v67, 1, v0
    v_and_b32 v67, 0x180, v67
    v_and_b32 v66, 0xfffffc7f, v0
    v_or_b32 v67, v66, v67
    v_rcp_f32 v30, v30
    s_mov_b64 exec, s[62:63]""")
    for r in range(4): A(f"v_pk_mul_f32 {R('v',22+2*r,2)}, {R('v',22+2*r,2)}, v[30:31] op_sel_hi:[1,0]")
    for r in range(4): A(f"v_cvt_pk_bf16_f32 v{34+r}, v{22+2*r}, v{23+2*r}")
    A.d("ds_write_b64 v6, v[34:35]"); A.d("ds_write_b64 v6, v[36:37] offset:1024", "ow")
    A("s_mov_b64 exec, -1")
    for i in range(38, 48, 2): A(f"v_mov_b64 v[{i}:{i+1}], 0")
    A.wd("ow"); A("s_barrier")
    stamp_(3)
    A.d("ds_read_b128 v[30:33], v0 offset:5120", "o4"); A.d("ds_read_b128 v[34:37], v0 offset:6144", "o5")
    for k in range(4): A.d(f"ds_read_b128 {R('v',14+4*k)}, v67 offset:{5120+512*k}", f"o{k}")
    for i in range(48, 58, 2): A(f"v_mov_b64 v[{i}:{i+1}], 0")
    def pf():
        A(f"v_lshlrev_b32 v68, 3, v0\ns_add_u32 s28, s35, {VF-KF}\ns_mov_b64 exec, s[84:85]")
        A.m("buffer_load_dword v68, s[8:11], s35 offen sc1 lds")
        if os.environ.get("P64"): A.m("buffer_load_dword v68, s[8:11], s35 offen offset:64 sc1 lds"); A.m("buffer_load_dword v68, s[8:11], s28 offen offset:64 sc1 lds")
        A.m("buffer_load_dword v68, s[8:11], s28 offen sc1 lds\ns_mov_b64 exec, -1")
    def wo(p, k): A(f"{SM} {R('v',38+4*p)}, {R('v',14+4*k)}, {R('v',80+72*(k>>1)+16*p+8*(k&1),8)}, v11")
    def quad(b, o):
        out = [f"v_cvt_pk_bf16_f32 v{o+r}, v{b+2*r}, v{b+2*r+1}" for r in range(4)]
        out += [f"v_and_or_b32 v{o+r}, v{o+r}, -2, s23" for r in range(4)]
        return out + ["s_nop 0", f"v_permlane16_swap_b32 v{o}, v{o+2}", f"v_permlane16_swap_b32 v{o+1}, v{o+3}"]
    t8 = ["s_nop 0", "s_nop 0", "s_nop 0"] + """v_permlane32_swap_b32 v54, v56
    v_permlane32_swap_b32 v55, v57
    v_add_f32 v54, v54, v56
    v_add_f32 v55, v55, v57
    v_cvt_pk_bf16_f32 v66, v54, v55
    v_and_or_b32 v66, v66, -2, s23""".split("\n") + [f"buffer_store_dword v66, v8, s[8:11], s32 offen {stf}"]
    A("s_nop 0")
    for t in range(2):
        A.wd(f"o{4+t}"); A(f"{SM} v[54:57], {R('v',30+4*t)}, {R('v',80+72*t+64,8)}, v11")
    for k in range(4):
        A.wd(f"o{k}"); wo(0, k); A(t8.pop(0))
        if k >= 2: A(t8.pop(0))
        wo(1, k); A(t8.pop(0))
    assert not t8
    q0 = ["s_nop 2", "s_nop 2"] + quad(38, 58) + [f"buffer_store_dwordx4 v[58:61], v7, s[8:11], s32 offen {stf}"]
    for k in range(4):
        for p in (2, 3):
            wo(p, k)
            for _ in range(2 if k else 1):
                if q0: A(q0.pop(0))
    assert not q0
    A.nop(5)
    for l in quad(46, 62): A(l)
    A(f"buffer_store_dwordx4 v[62:65], v7, s[8:11], s33 offen {stf}")
    stamp_(4)
    A(f"""s_add_u32 s36, s36, {0 if MODE == 3 else 262144}
    s_add_u32 s37, s37, {0 if MODE == 3 else 262144}
    s_add_u32 s38, s38, {0 if MODE == 2 else 131072}
    s_mov_b32 s82, s22
    s_add_u32 s22, s22, 1
    s_add_u32 s35, s35, {0 if MODE == 3 else 262144}
    s_mov_b32 s79, 0
    s_cmp_eq_u32 s78, 0
    s_cbranch_scc1 NORED{X}
    v_mov_b32 v34, 0x3f80
    v_mov_b32 v35, 0x3f800000
    v_cndmask_b32 v34, v34, v35, s[74:75]
    v_cndmask_b32 v30, 0, v34, s[66:67]
    v_cndmask_b32 v31, 0, v34, s[68:69]
    v_cndmask_b32 v32, 0, v34, s[70:71]
    v_cndmask_b32 v33, 0, v34, s[72:73]""")
    TO = f"s_add_u32 s79, s79, 1\ns_cmp_gt_u32 s79, 0x100000\ns_cbranch_scc1 CH_END"
    def issA(b):
        for i in range(4): A(f"buffer_load_dwordx4 {R('v',b+4*i)}, v0, s[8:11], s31 offen offset:{i*1024} sc1")
    def chkA(b):
        for i in range(4):
            A(f"s_waitcnt vmcnt({7-i})")
            A(f"{M32} v[34:37], v[30:33], {R('v',b+4*i)}, {'0' if i==0 else 'v[34:37]'}")
            for r in range(4):
                A(f"v_xor_b32 v14, s23, v{b}" if i+r == 0 else f"v_bitop3_b32 v14, v14, v{b+4*i+r}, s23 bitop3:0xf6")
        A(f"v_and_b32 v14, 1, v14\nv_cmp_ne_u32 vcc, 0, v14\ns_nop 0\ns_cbranch_vccz GOTA{X}")
    if DA: A(f"s_sleep {DA}")
    issA(38); A(f"s_sleep {DS}"); issA(54)
    A(f"POLLA{X}:")
    chkA(38); issA(38); chkA(54); issA(54); A(TO); A(f"s_branch POLLA{X}\nGOTA{X}:")
    for r in range(4): A(f"v_add_f32_dpp v{14+r}, v{34+r}, v{34+r} {DPP}")
    A(f"""v_cvt_pk_bf16_f32 v17, v16, v17
    v_cvt_pk_bf16_f32 v16, v14, v15
    v_and_or_b32 v16, v16, -2, s23
    s_mov_b64 exec, 0x00ff00ff
    buffer_store_dwordx2 v[16:17], v6, s[8:11], s30 offen {stf}
    s_mov_b64 exec, -1
    s_branch RED{X}
    NORED{X}:
    s_cmp_lt_u32 s20, 31
    s_cbranch_scc1 NOPF{X}""")
    if FLAGS: rdy(A, 38)
    A(f"""    NOPF{X}:
    s_sleep {DN}
    RED{X}:""")
    stamp_(5)
    ldW(0, 0, "k0"); ldW(1, 1, "k1")
    if DB: A(f"s_sleep {DB}")
    def issB(b, c):
        A(f"""buffer_load_dwordx4 {R('v',b)}, v9, s[8:11], s34 offen sc1
        buffer_load_dwordx4 {R('v',b+4)}, v9, s[8:11], s34 offen offset:1024 sc1
        buffer_load_dwordx2 {R('v',c,2)}, v10, s[8:11], s34 offen sc1""")
    def chkB(b, c, lab):
        A(f"s_waitcnt vmcnt(3)\nv_xor_b32 v38, s23, v{b}")
        for r in (b+2, b+4, b+6, c): A(f"v_bitop3_b32 v38, v38, v{r}, s23 bitop3:0xf6")
        A(f"v_and_b32 v38, 1, v38\nv_cmp_ne_u32 vcc, 0, v38\ns_nop 0\ns_cbranch_vccz {lab}")
    def wrB(b, c):
        A(f"ds_write_b128 v9, {R('v',b)}\nds_write_b128 v9, {R('v',b+4)} offset:1024\nds_write_b64 v10, {R('v',c,2)}")
    issB(14, 74)
    A("s_waitcnt vmcnt(3)\ns_mov_b32 s79, 0\nv_mov_b64 v[44:45], v[76:77]\nv_mov_b64 v[46:47], v[78:79]"); A(PA)
    for i in range(50, 66, 2): A(f"v_mov_b64 v[{i}:{i+1}], 0")
    if DS > 1: A(f"s_sleep {DS-1}")
    issB(66, 76)
    A(f"POLLB{X}:")
    chkB(14, 74, f"GOTB1{X}"); issB(14, 74); chkB(66, 76, f"GOTB2{X}"); issB(66, 76); A(TO); A(f"s_branch POLLB{X}\nGOTB1{X}:")
    wrB(14, 74); A(f"s_branch GOTB{X}\nGOTB2{X}:"); wrB(66, 76)
    A(f"""GOTB{X}:
    s_xor_b32 s23, s23, 1
    s_waitcnt lgkmcnt(0)
    buffer_load_dwordx4 v[14:17], v0, s[8:11], s36 offen sc1
    buffer_load_dwordx4 v[18:21], v0, s[8:11], s36 offen offset:1024 sc1
    s_mov_b32 s83, 131072""")
    if prof:
        stamp_(6)
        lb = A.lab("NP")
        A(f"s_waitcnt lgkmcnt(0)\ns_cmp_lg_u32 s22, 40\ns_cbranch_scc1 {lb}")
        for i in range(7): A(f"v_mov_b32 v{38+i}, s{86+2*i}")
        A(f"""s_lshl_b32 s28, s20, 2
        s_add_u32 s28, s28, s21
        s_lshl_b32 s28, s28, 5
        s_add_u32 s28, s28, {TS}
        v_mov_b32 v46, 0
        buffer_store_dwordx4 v[38:41], v46, s[8:11], s28 offen
        buffer_store_dwordx4 v[42:45], v46, s[8:11], s28 offen offset:16
        s_waitcnt vmcnt(0)
        {lb}:""")
    A(f"s_branch STEP{X}")
```

```python
from asmlib import *
from gemm import *
M16 = "v_mfma_f32_16x16x16_bf16"
def pro(A):
    A("""v_lshrrev_b32 v1, 6, v0
    v_and_b32 v0, 63, v0
    s_load_dwordx4 s[52:55], s[0:1], 104
    v_readfirstlane_b32 s21, v1
    s_waitcnt lgkmcnt(0)""")
    A.srd(8, 54, WSZ); A.srd(16, 52, 256)
def insrd(A, r, koff, size):
    A(f"s_load_dwordx2 s[{r}:{r+1}], s[0:1], {koff}\ns_mov_b32 s{r+2}, {size}\ns_mov_b32 s{r+3}, 0x00020000")
def rsum(A, v, t):
    for k in (8, 4, 2, 1):
        A(f"s_nop 1\nv_add_f32_dpp v{v}, v{v}, v{v} row_ror:{k} row_mask:0xf bank_mask:0xf")
PP = 0x8000000; PST = 2048*2304
def ln(A, second, sf="", lf="", part=None):
    A("s_lshl_b32 s44, s20, 2" if part else "s_lshl_b32 s44, s20, 4\ns_lshl_b32 s45, s21, 2\ns_add_u32 s44, s44, s45")
    A(f"""v_lshrrev_b32 v1, 4, v0
    v_add_u32 v2, s44, v1
    v_mul_u32_u24 v2, 1152, v2
    v_and_b32 v3, 15, v0
    v_lshl_add_u32 v2, v3, 3, v2""")
    if second: A(f"s_mov_b32 s44, {HH}\ns_mov_b32 s45, {HN}"); src = "s[8:11], s44"
    else:
        insrd(A, 12, 0, 2359296); src = "s[12:15], 0"
        lin(A, 3, 0, [(3, 1, 1024), (2, 1, 8), (0, 2, 256), (4, 2, 16)], 4)
        A(f"s_mul_i32 s44, s20, 18432\ns_lshl_b32 s45, s21, 6\ns_add_u32 s45, s45, s44\ns_add_u32 s45, s45, {XN}\ns_waitcnt lgkmcnt(0)")
    if part:
        insrd(A, 12, 0, 2359296); src = "s[12:15], 0"
        A(f"v_lshlrev_b32 v3, 1, v2\ns_mov_b32 s46, {PP}\ns_waitcnt lgkmcnt(0)")
    for i in range(9): A(f"buffer_load_dwordx2 v[{10+2*i}:{11+2*i}], v2, {src} offen offset:{128*i} {lf}")
    if part:
        def pl(k):
            for i in range(9): A(f"buffer_load_dwordx4 {R('v',66+36*(k%5)+4*i)}, v3, s[8:11], s46 offen offset:{256*i} sc1")
            A(f"s_add_u32 s46, s46, {PST}")
        part(); [pl(k) for k in range(5)]
        for k in range(18): A(f"v_lshlrev_b32 v{30+2*k}, 16, v{10+k}\nv_and_b32 v{31+2*k}, 0xffff0000, v{10+k}")
        for k in range(8):
            A(f"s_waitcnt vmcnt({9*min(4, 7-k)})")
            for i in range(18): A(f"v_pk_add_f32 {R('v',30+2*i,2)}, {R('v',30+2*i,2)}, {R('v',66+36*(k%5)+2*i,2)}")
            if k < 3: pl(k+5)
        for k in range(18): A(f"v_cvt_pk_bf16_f32 v{10+k}, v{30+2*k}, v{31+2*k}")
        for i in range(9): A(f"buffer_store_dwordx2 v[{10+2*i}:{11+2*i}], v2, s[8:11], s44 offen offset:{128*i} sc1")
    A(f"s_mov_b32 s46, {f2u(1/576)}\ns_mov_b32 s47, {f2u(1e-5)}")
    for p in range(2 if second else 1):
        for k in range(18):
            if p == 0 and k % 2 == 0 and not part: A(f"s_waitcnt vmcnt({8-k//2})")
            A(f"v_lshlrev_b32 v{30+2*k}, 16, v{10+k}\nv_and_b32 v{31+2*k}, 0xffff0000, v{10+k}")
            if k: A(f"v_pk_add_f32 v[4:5], v[{'4:5' if k > 1 else '30:31'}], v[{30+2*k}:{31+2*k}]")
        A("v_add_f32 v4, v4, v5"); rsum(A, 4, 5)
        A("v_mul_f32 v4, s46, v4\nv_mov_b32 v6, 0\nv_mov_b32 v7, 0\nv_mov_b32 v5, v4")
        for k in range(18):
            r = f"v[{30+2*k}:{31+2*k}]"
            A(f"v_pk_add_f32 {r}, {r}, v[4:5] neg_lo:[0,1] neg_hi:[0,1]\nv_pk_fma_f32 v[6:7], {r}, {r}, v[6:7]")
        A("v_add_f32 v6, v6, v7"); rsum(A, 6, 7)
        A("v_mov_b32 v7, s47\nv_fma_f32 v6, v6, s46, v7\nv_rsq_f32 v6, v6\ns_nop 0\nv_mov_b32 v7, v6")
        for k in range(18):
            r = f"v[{30+2*k}:{31+2*k}]"
            A(f"v_pk_mul_f32 {r}, {r}, v[6:7]\nv_cvt_pk_bf16_f32 v{10+k}, v{30+2*k}, v{31+2*k}")
    for i in range(9):
        if second: A(f"buffer_store_dwordx2 v[{10+2*i}:{11+2*i}], v2, s[8:11], s45 offen offset:{128*i} {sf}")
        else:
            A(f"buffer_store_dwordx2 v[{10+2*i}:{11+2*i}], v3, s[8:11], s45 offen offset:{2048*(i&1)} {sf}")
            if i & 1: A("s_add_u32 s45, s45, 4096")
class StA:
    def __init__(s, A, lf=""):
        s.A = A
        s.x = Op('fr', 8, 40, 18432, 8, list(range(8)), None, lf)
        s.w = [Op('tr', r, 41+i, 8192, 8, [0, 4], 21) for i, r in enumerate((12, 24, 28))]
        s.g = Gemm(A, [s.x]+s.w, 2, 2, 0, 21, 44)
    def setup(s):
        for i, r in enumerate((12, 24, 28)): insrd(s.A, r, 16+8*i, 4718592)
        s.g.setup_load(); s.g.setup_comp(); s.A("v_lshlrev_b32 v1, 4, v0\ns_waitcnt lgkmcnt(0)")
    def item(s, sf="", wait=None):
        A, g = s.A, s.g
        A(f"s_lshr_b32 s22, s20, 5\ns_and_b32 s23, s20, 31\ns_mul_i32 s40, s22, {8*18432}\ns_add_u32 s40, s40, {XN}\ns_lshl_b32 s41, s23, 8\ns_mov_b32 s42, s41\ns_mov_b32 s43, s41")
        for i in range(192): A(f"v_accvgpr_write_b32 a{i}, 0")
        acc = lambda op, t, j: ((op*8+t)*2+j)*4
        def mf(ks):
            o = []
            for op in range(3):
                for j in range(2):
                    for t in range(8):
                        a, b = R('v', g.frag(s.w[op], j, ks)), R('v', g.frag(s.x, t, ks))
                        if op == 2: a, b = b, a
                        c = R('a', acc(op, t, j)); o.append(f"{M32} {c}, {a}, {b}, {c}")
            return o
        g.run(9, mf, "both", 46, wait)
        A(f"s_lshl_b32 s22, s22, 20\ns_lshl_b32 s23, s23, 13\ns_add_u32 s22, s22, s23\ns_lshl_b32 s23, s21, 11\ns_add_u32 s22, s22, s23\ns_nop 7")
        n = 0
        for op, base in ((1, KF), (2, VF), (0, QF)):
            for sg in range(4):
                A(f"s_add_u32 s44, s22, {base + sg*262144}")
                for u in range(2):
                    p = (acc(op, 2*sg+u, 0), acc(op, 2*sg+u, 1)) if op < 2 else (acc(op, 2*sg, u), acc(op, 2*sg+1, u))
                    t = g.fb + 12*(n % 8); n += 1
                    for i in range(8): A(f"v_accvgpr_read_b32 v{t+i}, a{p[i>>2]+(i&3)}")
                    for i in range(4): A(f"v_cvt_pk_bf16_f32 v{t+8+i}, v{t+2*i}, v{t+2*i+1}")
                    A(f"buffer_store_dwordx4 {R('v',t+8)}, v1, s[8:11], s44 offen offset:{u*1024} {sf}")
def xred(A, op, a, b):
    for pl in ("v_permlane16_swap_b32", "v_permlane32_swap_b32"):
        for x, y in zip(a, b): A(f"v_mov_b32 v{y}, v{x}")
        A("s_nop 1")
        for x, y in zip(a, b): A(f"{pl} v{x}, v{y}")
        for x, y in zip(a, b): A(f"{op} v{x}, v{x}, v{y}")
def stC(A, lf="", mf="", sf="", wait=None):
    A(f"""v_lshlrev_b32 v1, 4, v0
    s_lshl_b32 s44, s22, 17
    s_lshl_b32 s45, s23, 12
    s_add_u32 s44, s44, s45
    s_lshl_b32 s45, s44, 1""")
    def ld(reg, n, base, sr, fl):
        for i in range(n):
            if i % 4 == 0: A(f"s_add_u32 s46, s{sr}, {base + i*1024}")
            A.m(f"buffer_load_dwordx4 {R('v', reg+4*i)}, v1, s[8:11], s46 offen offset:{(i%4)*1024} {fl}", reg)
    A.vm = []
    ld(8, 8, QF, 45, lf); ld(40, 8, KF, 45, lf); ld(88, 8, VF, 45, lf)
    A("v_and_b32 v2, 15, v0\nv_lshrrev_b32 v3, 4, v0\nv_lshlrev_b32 v3, 2, v3\nv_sub_u32 v2, v2, v3")
    for r in range(4): A(f"v_cmp_le_i32_e64 s[{60+2*r}:{61+2*r}], {r}, v2")
    A(f"v_mov_b32 v3, {f2u(-1e30)}\ns_mov_b32 s47, {f2u(128**-0.5*1.4426950408889634)}")
    S = {("m",0):136, ("m",1):140, (0,0):144, (0,1):148, (1,1):152}
    for tags, keys in (((40,), [(0,0),(0,1),(1,1)]), ((72,), [("m",0),("m",1)])):
        if tags == (72,): wait(); A.vm = []; ld(72, 4, KM, 44, mf); ld(120, 4, VM, 44, mf)
        A.wm(*tags)
        for w in range(4):
            for k, q in keys:
                a = 72+4*w if k == "m" else 40+4*(2*w+k); c = R('v', S[k,q])
                A(f"{M32} {c}, {R('v',a)}, {R('v',8+4*(2*w+q))}, {c if w else 0}")
    A.nop(8)
    for r in range(4): A(f"v_cndmask_b32_e64 v{144+r}, v3, v{144+r}, s[{60+2*r}:{61+2*r}]\nv_cndmask_b32_e64 v{152+r}, v3, v{152+r}, s[{60+2*r}:{61+2*r}]")
    T = {0: [136+i for i in range(4)]+[144+i for i in range(4)], 1: [140+i for i in range(4)]+[148+i for i in range(8)]}
    for q in (0, 1):
        t = T[q]; A(f"v_max_f32 v{4+q}, v{t[0]}, v{t[1]}")
        for i in range(2, len(t), 2): A(f"v_max3_f32 v{4+q}, v{t[i]}, v{t[i+1]}, v{4+q}")
    xred(A, "v_max_f32", [4, 5], [6, 7])
    A("v_mul_f32 v4, s47, v4\nv_mul_f32 v5, s47, v5")
    for q in (0, 1):
        for x in T[q]: A(f"v_fma_f32 v{x}, v{x}, s47, -v{4+q}")
        for x in T[q]: A(f"v_exp_f32 v{x}, v{x}")
    for q in (0, 1):
        t = T[q]; A(f"v_add_f32 v{4+q}, v{t[0]}, v{t[1]}\nv_add_f32 v6, v{t[2]}, v{t[3]}\nv_add_f32 v{4+q}, v{4+q}, v6\nv_mul_f32 v{4+q}, 0.5, v{4+q}")
        for x in t[4:]: A(f"v_add_f32 v{4+q}, v{4+q}, v{x}")
    xred(A, "v_add_f32", [4, 5], [6, 7])
    A("v_rcp_f32 v4, v4\nv_rcp_f32 v5, v5\nv_mov_b32 v162, 0\nv_mov_b32 v163, 0")
    for q in (0, 1):
        t = T[q]
        for x in t: A(f"v_mul_f32 v{x}, v{4+q}, v{x}")
        d = [156+2*q, 157+2*q] + [160+4*q+i for i in range(4)]
        for i in range(len(t)//2): A(f"v_cvt_pk_bf16_f32 v{d[i]}, v{t[2*i]}, v{t[2*i+1]}")
    A("s_waitcnt vmcnt(0)\ns_nop 0")
    for et in range(8):
        for q in (0, 1): A(f"{M16} {R('v',8+4*(2*et+q))}, {R('v',120+4*(et&3)+2*(et>>2),2)}, {R('v',156+2*q,2)}, 0")
    for et in range(8):
        for q in (0, 1): c = R('v',8+4*(2*et+q)); A(f"{M32} {c}, {R('v',88+4*(2*(et&3)+(et>>2)))}, {R('v',160+4*q)}, {c}")
    A(f"""s_lshl_b32 s44, s21, 12
    v_add_u32 v2, s44, v1
    s_mul_i32 s44, s74, {PST}
    s_mul_i32 s45, s22, {32*2304}
    s_add_u32 s44, s44, s45
    s_mul_i32 s45, s93, 768
    s_add_u32 s44, s44, s45
    s_mul_i32 s45, s21, 192
    s_add_u32 s44, s44, s45
    s_add_u32 s44, s44, {PP}
    s_add_u32 s45, s44, {16*2304}""")
    for p in range(4):
        for q in (0, 1):
            t = 72+4*(2*p+q)
            for i in range(4): x = 8+4*(2*(2*p+(i>>1))+q)+2*(i&1); A(f"v_cvt_pk_bf16_f32 v{t+i}, v{x}, v{x+1}")
            A(f"ds_write_b128 v2, {R('v',t)} offset:{q*16384+p*1024}")
    lin(A, 2, 0, [(0, 4, 2304), (4, 2, 16)], 3)
    A("s_waitcnt lgkmcnt(0)\ns_barrier"); A.ds = []
    rd = lambda k: [A.d(f"ds_read_b128 {R('v',8+8*k+4*q)}, v1 offset:{q*16384+k*1024}", k) for q in (0, 1)]
    for k in range(4): rd(k)
    for k in range(16):
        if k+4 < 16: rd(k+4)
        A.wd(k)
        for i in range(3):
            for q in (0, 1): c = R('v',136+4*(2*i+q)); A(f"{M32} {c}, {R('a',4*(16*i+k))}, {R('v',8+8*k+4*q)}, {c if k else 0}")
    A.nop(8)
    for i in range(3):
        for q in (0, 1): A(f"buffer_store_dwordx4 {R('v',136+4*(2*i+q))}, v2, s[8:11], s{44+q} offen offset:{64*i} {sf}")
def woinit(A):
    o = [Op('tr', 12, 40+i, 1152, 6, [0,1,2], 48) for i in range(2)]
    g = Gemm(A, o, 4, 2, 0, 21, 44); insrd(A, 12, 40, 4718592)
    A(f"s_mul_i32 s40, s74, {512*1152}\ns_mul_i32 s41, s93, 384\ns_add_u32 s40, s40, s41\ns_add_u32 s41, s40, 192\ns_and_b32 s48, s21, 1\ns_mul_i32 s48, s48, 3")
    g.setup_load(); g.setup_comp()
    A("s_lshr_b32 s44, s21, 1\ns_mul_i32 s44, s44, 12288\ns_waitcnt lgkmcnt(0)")
    for i in range(3): A(f"v_add_u32 v{o[0].va+i}, s44, v{o[0].va+i}\nv_add_u32 v{o[1].va+i}, 49152, v{o[0].va+i}")
    for rnd in range(2):
        A("s_barrier")
        for b in range(4):
            for l in g.dma(b): A(l)
        A("s_waitcnt vmcnt(0)\ns_barrier")
        for b in range(4):
            for ks in range(2):
                for i in range(3):
                    for q in range(2): A(f"ds_read_b64_tr_b16 {R('a',4*(16*i+8*rnd+2*b+ks)+2*q,2)}, v{o[b>>1].va+i} offset:{(b&1)*24576+(32*ks+16*q)*192}")
        A("s_waitcnt lgkmcnt(0)")
def stDF(A, F, NS=6, lf="", sf="", part=False, wait=None):
    if F:
        d = Op('fr', 8, 41, 147456, 6, [0,1,2], 48, lf); t = Op('tr', 12, 40, 4096, 4, [0,1], 47)
        insrd(A, 12, 80, 18874368); insrd(A, 24, 88, 4096); insrd(A, 28, 96, 2359296)
        A(f"s_lshl_b32 s40, s22, 7\ns_mul_i32 s41, s23, {6*147456}\ns_add_u32 s41, s41, {UU}")
    else:
        d = Op('tr', 12, 41, 1152, 6, [0,1,2], 48); t = Op('fr', 8, 40, 131072, 4, [0,1], 47, lf)
        insrd(A, 12, 40, 4718592); insrd(A, 24, 0, 2359296)
        A(f"s_lshl_b32 s40, s22, 19\ns_add_u32 s40, s40, {OF}\ns_mul_i32 s41, s23, 192")
    if part: A(f"s_lshl_b32 s44, s19x, 14\ns_add_u32 s40, s40, s44\ns_mul_i32 s44, s19x, {512*1152}\ns_add_u32 s41, s41, s44".replace("s19x", "s74"))
    g = Gemm(A, [t, d], NS, 64, 0, 21, 44)
    A(f"""s_and_b32 s47, s21, 1
    s_lshl_b32 s47, s47, 1
    s_lshr_b32 s48, s21, 1
    s_mul_i32 s48, s48, 3
    s_lshl_b32 s44, s22, 2
    s_add_u32 s44, s44, s47
    s_lshl_b32 s44, s44, 4
    v_and_b32 v2, 15, v0
    v_add_u32 v2, s44, v2
    v_lshlrev_b32 v4, 1, v2
    v_mul_u32_u24 v2, 1152, v2
    s_mul_i32 s44, s23, 192
    s_lshl_b32 s45, s48, 5
    s_add_u32 s44, s44, s45
    v_lshrrev_b32 v3, 4, v0
    v_lshl_add_u32 v2, v3, 3, v2
    v_add_u32 v2, s44, v2
    v_add_u32 v3, 18432, v2
    s_mov_b32 s49, {HH}""")
    g.setup_load(); g.setup_comp(); A("s_waitcnt lgkmcnt(0)")
    for i in range(0 if part else 3):
        for j in range(2): A(f"buffer_load_dwordx2 {R('v',8+2*(2*i+j),2)}, v{2+j}, {'s[8:11], s49' if F else 's[24:27], 0'} offen offset:{32*i} {lf if F else ''}")
    if F: A("buffer_load_ushort v5, v4, s[24:27], 0 offen\nbuffer_load_ushort v6, v4, s[24:27], 0 offen offset:32")
    for i in range(24): A(f"v_mov_b32 v{24+i}, 0")
    mf = lambda ks: [f"{M32} {R('v',24+4*(2*i+j))}, {R('v',g.frag(d,i,ks))}, {R('v',g.frag(t,j,ks))}, {R('v',24+4*(2*i+j))}" for i in range(3) for j in range(2)]
    g.run(72 if F else 8 if part else 64, mf, "both", 46, wait)
    if part:
        A(f"s_mul_i32 s49, s74, {PST}\ns_add_u32 s49, s49, {PP}\nv_lshlrev_b32 v2, 1, v2\nv_lshlrev_b32 v3, 1, v3\ns_nop 4")
        for i in range(3):
            for j in range(2): A(f"buffer_store_dwordx4 {R('v',24+4*(2*i+j))}, v{2+j}, s[8:11], s49 offen offset:{64*i} {sf}")
        return
    if F: A("v_lshlrev_b32 v5, 16, v5\nv_lshlrev_b32 v6, 16, v6")
    A("s_nop 7")
    for i in range(3):
        for j in range(2):
            c = 24+4*(2*i+j); r = 8+2*(2*i+j)
            for k in range(4):
                if F: A(f"v_add_f32 v{c+k}, v{5+j}, v{c+k}")
                A((f"v_and_b32 v20, 0xffff0000, v{r+(k>>1)}" if k & 1 else f"v_lshlrev_b32 v20, 16, v{r+(k>>1)}") + f"\nv_add_f32 v{c+k}, v20, v{c+k}")
            A(f"v_cvt_pk_bf16_f32 v{r}, v{c}, v{c+1}\nv_cvt_pk_bf16_f32 v{r+1}, v{c+2}, v{c+3}")
            A(f"buffer_store_dwordx2 {R('v',r,2)}, v{2+j}, {'s[28:31], 0' if F else 's[8:11], s49'} offen offset:{32*i} {sf}")
    return g.SB*NS
def stE(A, body, sf=""):
    h = Op('tr', 8, 70, 1152, 6, [0,1,2], 73, 'sc1'); w = Op('tr', 56, 71, 9216, 8, [0,1,2,3], 72)
    insrd(A, 56, 64, 18874368)
    g = Gemm(A, [h, w], 2, 176, 0, 21, 44, 106496)
    A(f"""s_mul_i32 s70, s69, 192
    s_add_u32 s70, s70, {HN}
    s_lshl_b32 s71, s68, 8
    s_and_b32 s72, s21, 1
    s_lshl_b32 s72, s72, 2
    s_lshr_b32 s73, s21, 1
    s_mul_i32 s73, s73, 3
    s_lshl_b32 s44, s72, 5
    s_add_u32 s44, s44, s71
    v_lshrrev_b32 v2, 4, v0
    v_lshl_add_u32 v250, v2, 3, s44""")
    g.setup_load(); g.setup_comp(); A("s_waitcnt lgkmcnt(0)")
    insrd(A, 24, 72, 9216); A("v_lshlrev_b32 v1, 4, v0\ns_waitcnt lgkmcnt(0)")
    for i in range(4): A(f"buffer_load_dwordx2 {R('v',8+2*i,2)}, v250, s[24:27], 0 offen offset:{32*i}")
    A("s_waitcnt vmcnt(0)")
    for i in range(8): A(f"v_lshlrev_b32 v{16+2*i}, 16, v{8+i}\nv_and_b32 v{17+2*i}, 0xffff0000, v{8+i}")
    for i in range(4):
        for j in range(3):
            for r in range(4): A(f"v_accvgpr_write_b32 a{192+4*(3*i+j)+r}, v{16+4*i+r}")
    mf = lambda ks: [f"{M32} {R('a',192+4*(3*i+j))}, {R('v',g.frag(w,i,ks))}, {R('v',g.frag(h,j,ks))}, {R('a',192+4*(3*i+j))}" for i in range(4) for j in range(3)]
    body(lambda wait: g.run(2, mf, "both", 46, wait))
    A("v_lshlrev_b32 v1, 4, v0\ns_nop 7\ns_nop 3")
    for i in range(48): A(f"v_accvgpr_read_b32 v{24+i}, a{192+i}")
    c0 = -2*0.7978845608028654*1.4426950408889634
    A(f"""s_mul_i32 s44, s69, 6
    s_add_u32 s44, s44, s73
    s_mul_i32 s44, s44, 147456
    s_lshl_b32 s45, s68, 3
    s_add_u32 s45, s45, s72
    s_lshl_b32 s45, s45, 9
    s_add_u32 s44, s44, s45
    s_add_u32 s44, s44, {UU}
    s_mov_b32 s45, {f2u(c0*0.044715)}
    v_mov_b32 v3, {f2u(c0)}""")
    b = g.fb
    for j in range(3):
        for p in range(2):
            u = [24+4*(3*(2*p+(k>>2))+j)+(k&3) for k in range(8)]; t = [16+k for k in range(8)]
            for k in range(8): A(f"v_mul_f32 v{t[k]}, v{u[k]}, v{u[k]}\nv_fma_f32 v{t[k]}, v{t[k]}, s45, v3\nv_mul_f32 v{t[k]}, v{t[k]}, v{u[k]}")
            for op in ("v_exp_f32 v{t}, v{t}", "v_add_f32 v{t}, 1.0, v{t}", "v_rcp_f32 v{t}, v{t}", "v_mul_f32 v{u}, v{t}, v{u}"):
                for k in range(8): A(op.format(t=t[k], u=u[k]))
            o = b+16+4*(2*j+p)
            for k in range(4): A(f"v_cvt_pk_bf16_f32 v{o+k}, v{u[2*k]}, v{u[2*k+1]}")
            A(f"buffer_store_dwordx4 {R('v',o)}, v1, s[8:11], s44 offen offset:{p*1024} {sf}")
        A("s_add_u32 s44, s44, 147456")
def stF(A, wait0, wait):
    insrd(A, 24, 88, 4096); insrd(A, 28, 96, 2359296)
    A("v_lshlrev_b32 v10, 4, v0")
    for i in range(1, 6): A(f"v_add_u32 v{10+i}, {147456*i}, v10")
    A(f"""s_mul_i32 s47, s21, 24576
    s_mul_i32 s40, s22, {4*147456}
    s_add_u32 s40, s40, {WF}
    s_mul_i32 s41, s23, {6*147456}
    s_lshl_b32 s44, s21, 10
    s_add_u32 s41, s41, s44
    s_add_u32 s40, s40, s44
    s_add_u32 s41, s41, {UU}
    s_waitcnt lgkmcnt(0)""")
    wait0()
    wl = lambda k: [f"buffer_load_dwordx4 {R('a',96+16*(k%6)+4*j)}, v{10+j}, s[8:11], s40 offen sc1" + ("\ns_add_u32 s40, s40, 4096" if j == 3 else "") for j in range(4)]
    ul = lambda k, i: f"buffer_load_dwordx4 {R('v',16+24*(k%6)+4*i)}, v{10+i}, s[8:11], s41 offen sc1" + ("\ns_add_u32 s41, s41, 4096" if i == 5 else "")
    A.vm = []
    for k in range(6):
        for l in wl(k): A.m(l, k)
    for i in range(96): A(f"v_accvgpr_write_b32 a{i}, 0")
    A(f"""s_lshl_b32 s44, s22, 2
    s_add_u32 s44, s44, s21
    s_lshl_b32 s44, s44, 4
    v_and_b32 v192, 15, v0
    v_add_u32 v192, s44, v192
    v_lshlrev_b32 v193, 1, v192
    v_mul_u32_u24 v192, 1152, v192
    v_lshrrev_b32 v194, 4, v0
    v_lshl_add_u32 v192, v194, 3, v192
    s_mul_i32 s48, s23, 192
    s_add_u32 s49, s48, {HH}""")
    A.m("buffer_load_ushort v193, v193, s[24:27], 0 offen")
    wait()
    for i in range(6): A.m(ul(0, i), 0)
    for i in range(6): A.m(f"buffer_load_dwordx2 {R('v',196+2*i,2)}, v192, s[8:11], s49 offen offset:{32*i} sc1")
    for k in range(1, 6):
        for i in range(6): A.m(ul(k, i), k)
    for k in list(range(12)) + list(range(30, 36)):
        if k == 6: A("s_mov_b32 s46, 4\nFLOOP:")
        if k == 30: A("s_sub_u32 s46, s46, 1\ns_cmp_lg_u32 s46, 0\ns_cbranch_scc1 FLOOP")
        if k < 12: A.wm(k)
        else: A(f"s_waitcnt vmcnt({10*(35-k)})")
        for i in range(6):
            for t in range(4):
                c = R('a', 4*(6*t+i)); A(f"{M32} {c}, {R('v',16+24*(k%6)+4*i)}, {R('a',96+16*(k%6)+4*t)}, {c}")
                if i == 5 and k < 30: A.m(wl(k)[t], k+6)
            if k < 30: A.m(ul(k, i), k+6)
    A("s_lshl_b32 s44, s21, 10\nv_add_u32 v2, s44, v10\nv_add_u32 v3, 49152, v2\nv_add_u32 v4, s47, v10\ns_nop 7\ns_barrier")
    for t in range(4):
        for i in range(6): A(f"ds_write_b128 v{2+(t>>1)}, {R('a',4*(6*t+i))} offset:{(t&1)*24576+i*4096}")
    A("s_waitcnt lgkmcnt(0)\ns_barrier\nv_lshlrev_b32 v193, 16, v193"); A.ds = []
    for i in range(6):
        for u in range(4): A.d(f"ds_read_b128 {R('v',16+16*i+4*u)}, v4 offset:{i*4096+u*1024}", i)
    for i in range(6):
        c = 16+16*i; r = 196+2*i
        for k in range(4): A((f"v_and_b32 v{6+k}, 0xffff0000, v{r+(k>>1)}" if k & 1 else f"v_lshlrev_b32 v{6+k}, 16, v{r+(k>>1)}") + f"\nv_add_f32 v{6+k}, v193, v{6+k}")
        A.wd(i)
        for u in range(4): A(f"v_pk_add_f32 v[6:7], v[6:7], {R('v',c+4*u,2)}\nv_pk_add_f32 v[8:9], v[8:9], {R('v',c+4*u+2,2)}")
        A(f"v_cvt_pk_bf16_f32 v{r}, v6, v7\nv_cvt_pk_bf16_f32 v{r+1}, v8, v9\nbuffer_store_dwordx2 {R('v',r,2)}, v192, s[28:31], s48 offen offset:{32*i}")
WF = 0xB000000
def w2t(A):
    insrd(A, 12, 80, 18874368); A("s_mul_i32 s47, s21, 24576")
    lin(A, 2, 0, [(4, 2, 2)], 3); A("v_and_b32 v3, 7, v0\nv_xor_b32 v2, v2, v3\nv_lshlrev_b32 v2, 4, v2\nv_lshrrev_b32 v3, 3, v0\nv_lshl_add_u32 v2, v3, 12, v2")
    for j in range(1, 4): A(f"v_add_u32 v{2+j}, {32768*j}, v2")
    lin(A, 10, 0, [(2, 4, 128), (0, 2, 8)], 11, "s47")
    for t in range(4): A(f"v_bfe_u32 v11, v0, 3, 2\nv_xor_b32 v11, {t}, v11\nv_lshl_add_u32 v{6+t}, v11, 5, v10")
    A("v_lshlrev_b32 v10, 4, v0\ns_waitcnt lgkmcnt(0)\ns_barrier")
    for rnd in range(2):
        for n in range(5):
            A(f"s_add_u32 s44, s7, {480*(5*rnd+n)}\ns_min_u32 s44, s44, 4607\ns_lshr_b32 s45, s44, 5\ns_and_b32 s44, s44, 31\ns_lshl_b32 s40, s45, 17\ns_lshl_b32 s41, s44, 7\ns_add_u32 s40, s40, s41")
            A(f"s_mul_i32 s44, s44, {4*147456}\ns_lshl_b32 s41, s45, 10\ns_add_u32 s44, s44, s41\ns_add_u32 s{60+n}, s44, {WF}")
            for j in range(4): A(f"s_add_u32 m0, s47, {n*4096+j*1024}\ns_nop 0\nbuffer_load_dwordx4 v{2+j}, s[12:15], s40 offen lds")
        A("s_waitcnt vmcnt(0)")
        for n in range(5):
            for t in range(4):
                for q in range(2): A(f"ds_read_b64_tr_b16 {R('v',16+16*n+4*t+2*q,2)}, v{6+t} offset:{n*4096+q*2048}")
            A("s_waitcnt lgkmcnt(0)")
            for t in range(4): A(f"buffer_store_dwordx4 {R('v',16+16*n+4*t)}, v10, s[8:11], s{60+n} offen sc1\ns_add_u32 s{60+n}, s{60+n}, 147456")
XB = 0xD000000
def wfr(k, j):
    n = 2*k+j
    return R('a', 4*n) if n < 48 else R('a', 240+4*(n-48)) if n < 52 else R('v', 96+4*(n-52))
def fidx(A):
    A("s_lshr_b32 s82, s2, 5\ns_lshl_b32 s82, s82, 1\ns_and_b32 s44, s2, 1\ns_add_u32 s82, s82, s44\ns_bfe_u32 s83, s2, 0x20003\ns_bfe_u32 s84, s2, 0x20001")
def fpre(A):
    fidx(A)
    A(f"""s_lshl_b32 s44, s82, 2
    s_add_u32 s44, s44, s21
    s_mul_i32 s44, s44, {2*147456}
    s_mul_i32 s45, s84, 36864
    s_add_u32 s44, s44, s45
    s_add_u32 s44, s44, {WF}
    v_lshlrev_b32 v252, 4, v0
    v_add_u32 v253, 147456, v252""")
    for k in range(36):
        for j in range(2): A(f"buffer_load_dwordx4 {wfr(k,j)}, v{252+j}, s[8:11], s44 offen offset:{(k%4)*1024} sc1")
        if k % 4 == 3: A("s_add_u32 s44, s44, 4096")
def stF2(A, wait, xsync):
    insrd(A, 24, 88, 4096); insrd(A, 28, 96, 2359296)
    A("v_lshlrev_b32 v1, 4, v0")
    for i in range(9): A(f"v_add_u32 v{2+i}, {147456*i}, v1")
    A(f"""v_add_u32 v11, 36864, v1
    v_add_u32 v12, {2*36864}, v1
    v_add_u32 v13, {3*36864}, v1
    s_mul_i32 s40, s83, {9*147456}
    s_mul_i32 s44, s84, 36864
    s_add_u32 s40, s40, s44
    s_lshl_b32 s44, s21, 10
    s_add_u32 s40, s40, s44
    s_add_u32 s40, s40, {UU}
    s_mul_i32 s47, s21, 9216""")
    dma = lambda s: [f"s_add_u32 m0, s47, {(s%4)*36864+i*1024}\ns_nop 0\nbuffer_load_dwordx4 v{2+i}, s[8:11], s40 offen sc1 lds" + ("\ns_add_u32 s40, s40, 4096" if i == 8 else "") for i in range(9)]
    rd = lambda k: [f"ds_read_b128 {R('v',24+36*(k&1)+4*i)}, v{(1,11,12,13)[(k>>2)%4]} offset:{(k&3)*9216+i*1024}" for i in range(9)]
    wait()
    if os.environ.get("TWICE"): A("s_mov_b32 s96, 0\ns_mov_b32 s97, s40\nFAG:"); stamp(A, 24, "s2", 251)
    for s in range(4):
        for l in dma(s): A(l)
    A("s_waitcnt vmcnt(27)\ns_barrier")
    if os.environ.get("TWICE"): stamp(A, 25, "s2", 251)
    for l in rd(0): A(l)
    for k in range(36):
        s = k >> 2; o = []
        if k % 4 == 3 and k < 35:
            A(f"s_waitcnt vmcnt({18 if s == 0 else 9 if s < 7 else 0})\ns_barrier")
            if 1 <= s < 6: o = dma(s+3)
        for i in range(9):
            A(f"s_waitcnt lgkmcnt({8 if k < 35 else 8-i})")
            for j in range(2):
                c = R('v', 176+4*(2*i+j)); A(f"{M32} {c}, {R('v',24+36*(k&1)+4*i)}, {wfr(k,j)}, {c if k else 0}")
                if j == 0 and k < 35: A(rd(k+1)[i])
                if j == 1 and o: A(o.pop(0))
    if os.environ.get("TWICE"): A("s_barrier\ns_mov_b32 s40, s97\ns_add_u32 s96, s96, 1\ns_cmp_eq_u32 s96, 1\ns_cbranch_scc1 FAG"); stamp(A, 23, "s2", 251)
    A(f"""s_lshl_b32 s44, s82, 2
    s_add_u32 s44, s44, s83
    s_lshl_b32 s75, s44, 7
    s_add_u32 s75, s75, {FL+32768}
    s_mul_i32 s44, s44, {16*9216}
    s_add_u32 s44, s44, {XB}
    s_lshl_b32 s45, s21, 2
    s_add_u32 s45, s45, s84
    s_mul_i32 s45, s45, 9216
    s_add_u32 s45, s45, s44
    s_mul_i32 s46, s84, {4*9216}
    s_add_u32 s46, s46, s44
    s_nop 3""")
    for n in range(9):
        for q in range(4): A(f"v_cvt_pk_bf16_f32 v{24+4*n+q}, v{176+8*n+2*q}, v{177+8*n+2*q}")
        A(f"buffer_store_dwordx4 {R('v',24+4*n)}, v1, s[8:11], s45 offen offset:{(n%4)*1024} sc1")
        if n % 4 == 3: A("s_add_u32 s45, s45, 4096")
    lin(A, 2, 0, [(0, 4, 1152), (4, 2, 8)], 3); lin(A, 3, 0, [(0, 4, 2)], 4)
    for u in range(1, 4): A(f"v_add_u32 v{3+u}, {9216*u}, v1")
    A(f"""v_add_u32 v7, 18432, v2
    s_min_u32 s44, s21, 2
    s_mul_i32 s45, s44, 3072
    s_add_u32 s46, s46, s45
    s_lshl_b32 s50, s82, 2
    s_add_u32 s50, s50, s84
    s_mul_i32 s45, s50, 36864
    s_lshl_b32 s50, s50, 6
    s_mul_i32 s44, s44, 96
    s_add_u32 s45, s45, s44
    s_mul_i32 s44, s83, 288
    s_add_u32 s60, s45, s44
    s_add_u32 s45, s60, {HH}
    buffer_load_ushort v20, v3, s[24:27], s50 offen
    buffer_load_ushort v21, v3, s[24:27], s50 offen offset:32""")
    for n in range(3):
        for j in range(2): A(f"buffer_load_dwordx2 {R('v',8+4*n+2*j,2)}, v{(2,7)[j]}, s[8:11], s45 offen offset:{32*n} sc1")
    xsync()
    A("s_cmp_eq_u32 s21, 3\ns_cbranch_scc1 BG_END")
    for n in range(3):
        for u in range(4): A(f"buffer_load_dwordx4 {R('v',64+16*n+4*u)}, v{(1,4,5,6)[u]}, s[8:11], s46 offen offset:{1024*n} sc1")
    A("v_lshlrev_b32 v20, 16, v20\nv_lshlrev_b32 v21, 16, v21")
    up = lambda d, r, k: f"v_and_b32 v{d}, 0xffff0000, v{r+(k>>1)}" if k & 1 else f"v_lshlrev_b32 v{d}, 16, v{r+(k>>1)}"
    for n in range(3):
        for k in range(8): A(up(24+k, 8+4*n, k) + f"\nv_add_f32 v{24+k}, v{20+(k>>2)}, v{24+k}")
        A(f"s_waitcnt vmcnt({8-2*n})")
        for u in range(4):
            for k in range(8): A(up(32+k, 64+16*n+4*u, k))
            for k in range(4): A(f"v_pk_add_f32 {R('v',24+2*k,2)}, {R('v',24+2*k,2)}, {R('v',32+2*k,2)}")
        for k in range(4): A(f"v_cvt_pk_bf16_f32 v{8+4*n+k}, v{24+2*k}, v{25+2*k}")
        for j in range(2): A(f"buffer_store_dwordx2 {R('v',8+4*n+2*j,2)}, v{(2,7)[j]}, s[28:31], s60 offen offset:{32*n}")
```
